```python
import torch

def _softmax(x, axis=-1):
    return torch.softmax(x, dim=axis)

def _gelu(x):
    return torch.nn.functional.gelu(x, approximate='tanh')

def _silu(x):
    return torch.nn.functional.silu(x)

def _sigmoid(x):
    return torch.sigmoid(x)

def _layernorm(x, axis=-1, eps=1e-05):
    m = x.mean(dim=axis, keepdim=True)
    v = x.var(dim=axis, keepdim=True, unbiased=False)
    return (x - m) / torch.sqrt(v + eps)

def _scatter_add(tgt, idx, src, axis=0):
    return tgt.clone().index_add_(axis, idx, src)

def _segment_sum(src, seg, n):
    out = torch.zeros((n,) + src.shape[1:], dtype=src.dtype)
    return out.index_add_(0, seg, src)

def _pad(x, pw):
    flat = tuple((v for pair in reversed(pw) for v in pair))
    return torch.nn.functional.pad(x, flat)
kernel_name = 'parallel_sum__memory_aug_recurrent_mem_tr__moe_arch_mod__prompt'

def setup_inputs():

    _w = lambda a: (lambda t: t.to(torch.bfloat16) if t.is_floating_point() else t)(torch.as_tensor(a))

    def _A_setup():
        B, S, Dm = (1, 2048, 512)
        H, Dh = (32, 128)
        M, seg = (8, 32)
        seg = min(seg, S)
        S = S // seg * seg
        return {'x': _w((lambda *s: torch.randn(*s, dtype=torch.bfloat16) * 0.05)(B, S, Dm)), 'mem0': _w((lambda *s: torch.randn(*s, dtype=torch.bfloat16) * 1.6)(B, M, Dm)), 'Wq': _w((lambda *s: torch.randn(*s, dtype=torch.bfloat16) * 0.8)(Dm, H, Dh) * Dm ** (-0.5)), 'Wk': _w((lambda *s: torch.randn(*s, dtype=torch.bfloat16) * 0.8)(Dm, H, Dh) * Dm ** (-0.5)), 'Wv': _w((lambda *s: torch.randn(*s, dtype=torch.bfloat16) * 1.6)(Dm, H, Dh) * Dm ** (-0.5)), 'Wo': _w((lambda *s: torch.randn(*s, dtype=torch.bfloat16) * 1.6)(H, Dh, Dm) * (H * Dh) ** (-0.5)), 'seg_len': seg}
    _A_in = _A_setup()

    def _B_setup():
        B, S, D, F, C = (1, 2048, 512, 1792, 8)
        return {'x': _w((lambda *s: torch.randn(*s, dtype=torch.bfloat16) * 0.05)(B, S, D)), 'w_r': _w((lambda *s: torch.randn(*s, dtype=torch.bfloat16) * 0.05)(D)), 'w_gate': _w((lambda *s: torch.randn(*s, dtype=torch.bfloat16) * 0.05)(D, F)), 'w_up': _w((lambda *s: torch.randn(*s, dtype=torch.bfloat16) * 0.05)(D, F)), 'w_down': _w((lambda *s: torch.randn(*s, dtype=torch.bfloat16) * 0.05)(F, D))}
    _B_in = _B_setup()
    return {'A_x': _A_in['x'], 'A_mem0': _A_in['mem0'], 'A_Wq': _A_in['Wq'], 'A_Wk': _A_in['Wk'], 'A_Wv': _A_in['Wv'], 'A_Wo': _A_in['Wo'], 'A_seg_len': _A_in['seg_len'], 'B_x': _B_in['x'], 'B_w_r': _B_in['w_r'], 'B_w_gate': _B_in['w_gate'], 'B_w_up': _B_in['w_up'], 'B_w_down': _B_in['w_down']}

def reference(A_x, A_mem0, A_Wq, A_Wk, A_Wv, A_Wo, A_seg_len, B_x, B_w_r, B_w_gate, B_w_up, B_w_down):

    def _A_ref(x, mem0, Wq, Wk, Wv, Wo, seg_len):
        B, S, Dm = x.shape
        H, Dh = (Wq.shape[1], Wq.shape[2])
        M = mem0.shape[1]
        scale = Dh ** (-0.5)
        n_seg = S // seg_len
        L = M + seg_len
        idx = torch.arange(L)
        mask = (idx[:, None] < M) | (idx[:, None] >= idx[None, :])
        mem = mem0
        outs = []
        for s in range(n_seg):
            xs = x[:, s * seg_len:(s + 1) * seg_len, :].clone()
            h = torch.concatenate([mem, xs], axis=1)
            q = torch.einsum('btd,dhe->bhte', h, Wq)
            k = torch.einsum('btd,dhe->bhte', h, Wk)
            v = torch.einsum('btd,dhe->bhte', h, Wv)
            scores = torch.einsum('bhqe,bhke->bhqk', q, k) * scale
            scores = torch.where(mask[None, None], scores, -1000000000.0)
            p = _softmax(scores, axis=-1)
            o = torch.einsum('bhqk,bhke->bhqe', p, v)
            o = torch.einsum('bhte,hed->btd', o, Wo)
            mem = o[:, :M, :].clone()
            outs.append(o[:, M:, :])
        return torch.concatenate(outs, axis=1)

    def _B_ref(x, w_r, w_gate, w_up, w_down):
        B, S, D = x.shape
        C = 8
        r = x @ w_r
        idx = torch.argsort(-r, axis=-1)[:, :C]
        idx_e = (lambda x, n, axis: torch.repeat_interleave(x, n, dim=axis))(idx.reshape(B, C, 1), D, axis=2)
        x_sel = (lambda x, i, axis: torch.take_along_dim(x, i, dim=axis))(x, idx_e, axis=1)
        g = _silu(x_sel @ w_gate)
        u = x_sel @ w_up
        y = g * u @ w_down
        r_sel = _sigmoid((lambda x, i, axis: torch.take_along_dim(x, i, dim=axis))(r, idx, axis=1))
        y = y * r_sel.reshape(B, C, 1)
        b_off = (torch.arange(B) * S).reshape(B, 1)
        flat_idx = (idx + b_off).reshape(B * C)
        zero = (x * 0.0).reshape(B * S, D)
        upd = _scatter_add(zero, flat_idx, y.reshape(B * C, D), axis=0)
        return x + upd.reshape(B, S, D)
    x = A_x
    xn = _layernorm(x, axis=-1)
    return x + _A_ref(xn, A_mem0, A_Wq, A_Wk, A_Wv, A_Wo, A_seg_len) + _B_ref(xn, B_w_r, B_w_gate, B_w_up, B_w_down)
```

```python
NAME = "parallel_sum__memory_aug_recurrent_mem_tr__moe_arch_mod__prompt"
MB = 1 << 20
KA = dict(x=0, mem0=8, Wq=16, Wk=24, Wv=32, Wo=40, seg=48, Bx=56, wr=64, wg=72, wu=80, wd=88, out=96, dbg=104, ws=112)
OFF_XN  = 0
OFF_XNF = 2*MB
OFF_R   = 4*MB
OFF_MOE = 4*MB + 65536
OFF_FLG = 4*MB + 262144
F_QKV = OFF_FLG
F_M   = OFF_FLG + 16384
F_A   = OFF_FLG + 49152
F_MISC= OFF_FLG + 65536
FLG_BYTES = 65536 + 4096
OFF_MEM = 5*MB
OFF_P   = 6*MB
NRING = 4
OFF_WQF = 8*MB
OFF_WKF = 12*MB
OFF_WVF = 16*MB
OFF_WOF = 20*MB
OFF_QF  = 32*MB
OFF_KF  = 48*MB
OFF_VF  = 64*MB
OFF_KMF = 80*MB
OFF_VMF = 88*MB
OFF_OF  = 96*MB

class Asm:
    def __init__(self):
        self.lines = []
        self.kernels = []
        self.uid = 0
    def __call__(self, s):
        for l in s.strip("\n").split("\n"):
            self.lines.append("    " + l.strip())
    def label(self, l):
        self.lines.append(l + ":")
    def newlabel(self, p="L"):
        self.uid += 1
        return f"{p}_{self.uid}"
    def begin(self, name):
        self.lines += [f".globl {name}", ".p2align 8", f".type {name},@function", f"{name}:"]
    def end(self, name, vgpr, accum, sgpr=102):
        self("s_endpgm")
        self.kernels.append((name, vgpr, accum, sgpr))
    def text(self, launches):
        hdr = []
        for (k, g, b, lds) in launches:
            hdr.append(f"; @launch kernel={k} grid=({g},1,1) block=({b},1,1) lds={lds}")
        out = hdr + ['.amdgcn_target "amdgcn-amd-amdhsa--gfx950"', ".text"] + self.lines
        out.append('.section .rodata,"a"')
        for (name, vgpr, accum, sgpr) in self.kernels:
            out += [".p2align 6", f".amdhsa_kernel {name}",
                    f"  .amdhsa_next_free_vgpr {vgpr}", f"  .amdhsa_next_free_sgpr {sgpr}",
                    f"  .amdhsa_accum_offset {accum}", "  .amdhsa_group_segment_fixed_size 0",
                    "  .amdhsa_kernarg_size 120", "  .amdhsa_user_sgpr_count 2",
                    "  .amdhsa_user_sgpr_kernarg_segment_ptr 1", "  .amdhsa_system_sgpr_workgroup_id_x 1",
                    ".end_amdhsa_kernel"]
        return "\n".join(out) + "\n"

def vr(b, n=1):
    return f"v{b}" if n == 1 else f"v[{b}:{b+n-1}]"
def ar(b, n=1):
    return f"a{b}" if n == 1 else f"a[{b}:{b+n-1}]"
def sr(b, n=1):
    return f"s{b}" if n == 1 else f"s[{b}:{b+n-1}]"

def load_ptr(a, sreg, which):
    a(f"s_load_dwordx2 {sr(sreg,2)}, s[0:1], {KA[which]}")

def add64_imm(a, sd, ss, imm):
    a(f"s_add_u32 s{sd}, s{ss}, {imm}")
    a(f"s_addc_u32 s{sd+1}, s{ss+1}, 0")

def wave_reduce(a, v, t, op="add", skip_low=0):
    ins = {"add": "v_add_f32", "max": "v_max_f32", "maxu": "v_max_u32"}[op]
    for ctl in ["quad_perm:[1,0,3,2]", "quad_perm:[2,3,0,1]", "row_half_mirror", "row_mirror"]:
        a("s_nop 1")
        a(f"{ins}_dpp v{v}, v{v}, v{v} {ctl} row_mask:0xf bank_mask:0xf")
    xor_reduce_16_32(a, v, t, op)

def xor_reduce_16_32(a, v, t, op="add"):
    ins = {"add": "v_add_f32", "max": "v_max_f32", "maxu": "v_max_u32"}[op]
    for sw in ["v_permlane16_swap_b32", "v_permlane32_swap_b32"]:
        a(f"v_mov_b32 v{t}, v{v}")
        a("s_nop 1")
        a(f"{sw} v{v}, v{t}")
        a("s_nop 1")
        a(f"{ins} v{v}, v{v}, v{t}")

def round_bf16(a, v, n=1):
    a(f"v_cvt_pk_bf16_f32 v{v}, v{v}, v{v}")
    a(f"v_lshlrev_b32 v{v}, 16, v{v}")
```

```python
from common import *
SCALE = 0x3db504f3
LOG2E = 0x3fb8aa3b

def attn_body(a, pre, sc_km="", qts=(0,1), sc=""):
    Q, K, KM, V, VM = 8, 40, 72, 88, 120
    S = 152
    O = 8
    a("s_lshl_b32 s16, s12, 13")
    a(f"s_add_u32 s17, s16, {OFF_QF}")
    a("s_add_u32 s18, s4, s17"); a("s_addc_u32 s19, s5, 0")
    a(f"s_add_u32 s17, s16, {OFF_KF}")
    a("s_add_u32 s20, s4, s17"); a("s_addc_u32 s21, s5, 0")
    a(f"s_add_u32 s17, s16, {OFF_VF}")
    a("s_add_u32 s22, s4, s17"); a("s_addc_u32 s23, s5, 0")
    a("s_lshl_b32 s16, s12, 12")
    a(f"s_add_u32 s17, s16, {OFF_KMF}")
    a("s_add_u32 s24, s4, s17"); a("s_addc_u32 s25, s5, 0")
    a(f"s_add_u32 s17, s16, {OFF_VMF}")
    a("s_add_u32 s26, s4, s17"); a("s_addc_u32 s27, s5, 0")
    a("v_add_u32 v4, 4096, v3")
    a("v_lshrrev_b32 v5, 1, v3")
    nqk = 0
    for i in range(8):
        if (i & 1) not in qts: continue
        a(f"global_load_dwordx4 {vr(Q+4*i,4)}, v{3 if i<4 else 4}, s[18:19] offset:{(i&3)*1024}{sc}")
    for i in range(8):
        if (i & 1) == 1 and 1 not in qts: continue
        a(f"global_load_dwordx4 {vr(K+4*i,4)}, v{3 if i<4 else 4}, s[20:21] offset:{(i&3)*1024}{sc}")
    for i in range(4):
        a(f"global_load_dwordx4 {vr(KM+4*i,4)}, v3, s[24:25] offset:{i*1024}{sc_km}")
    for i in range(8):
        a(f"global_load_dwordx4 {vr(V+4*i,4)}, v{3 if i<4 else 4}, s[22:23] offset:{(i&3)*1024}{sc}")
    for i in range(16):
        a(f"v_mov_b64 {vr(VM+2*i,2)}, 0")
    a("s_mov_b32 exec_hi, 0")
    for i in range(8):
        a(f"global_load_dwordx2 {vr(VM+4*i,2)}, v5, s[26:27] offset:{i*512}{sc_km}")
    a("s_mov_b32 exec_hi, -1")
    a("v_lshrrev_b32 v6, 4, v2")
    a("v_lshlrev_b32 v6, 2, v6")
    a("v_and_b32 v7, 15, v2")
    for r in range(4):
        a(f"v_add_u32 v1, {r}, v6")
        a(f"v_cmp_le_u32 s[{28+2*r}:{29+2*r}], v1, v7")
    a("s_mov_b32 s36, -1"); a("s_mov_b32 s37, 0")
    a("s_waitcnt vmcnt(16)")
    for qt in qts:
        for kt in range(3):
            if qt == 0 and kt == 2: continue
            for w in range(4):
                A = KM+4*w if kt == 0 else K + 4*(2*w + kt-1)
                acc = vr(S+(qt*3+kt)*4, 4)
                c = "0" if w == 0 else acc
                a(f"v_mfma_f32_16x16x32_bf16 {acc}, {vr(A,4)}, {vr(Q+4*(2*w+qt),4)}, {c}")
    a("s_nop 7")
    a("v_mov_b32 v200, 0xff800000")
    a(f"v_mov_b32 v201, 0x{LOG2E:08x}")
    PX = 176
    for qt in qts:
        kts = (0, 1) if qt == 0 else (0, 1, 2)
        regs = []
        for kt in kts:
            b = S + (qt*3+kt)*4
            for rr in range(2):
                a(f"v_cvt_pk_bf16_f32 v202, v{b}, v{b+1}")
                a(f"v_cvt_pk_bf16_f32 v203, v{b+2}, v{b+3}")
                a(f"v_lshlrev_b32 v{b}, 16, v202")
                a(f"v_and_b32 v{b+1}, 0xffff0000, v202")
                a(f"v_lshlrev_b32 v{b+2}, 16, v203")
                a(f"v_and_b32 v{b+3}, 0xffff0000, v203")
                if rr == 0:
                    for r in range(4): a(f"v_mul_f32 v{b+r}, 0x{SCALE:08x}, v{b+r}")
            for r in range(4):
                if kt == 0:
                    a(f"v_cndmask_b32 v{b+r}, v200, v{b+r}, s[36:37]")
                elif kt - 1 == qt:
                    a(f"v_cndmask_b32 v{b+r}, v200, v{b+r}, s[{28+2*r}:{29+2*r}]")
                regs.append(b+r)
        a(f"v_max_f32 v204, v{regs[0]}, v{regs[1]}")
        for i in range(2, len(regs), 2):
            a(f"v_max3_f32 v204, v204, v{regs[i]}, v{regs[i+1]}")
        xor_reduce_16_32(a, 204, 205, "max")
        for r in regs:
            a(f"v_sub_f32 v{r}, v{r}, v204")
            a(f"v_mul_f32 v{r}, v201, v{r}")
            a(f"v_exp_f32 v{r}, v{r}")
        a("s_nop 0")
        a(f"v_add_f32 v204, v{regs[0]}, v{regs[1]}")
        for r in regs[2:]:
            a(f"v_add_f32 v204, v204, v{r}")
        xor_reduce_16_32(a, 204, 205, "add")
        a("v_rcp_f32 v204, v204")
        a("s_nop 0")
        for r in regs:
            a(f"v_mul_f32 v{r}, v{r}, v204")
        px = PX + 8*qt; pm = px + 4
        b0 = S + (qt*3)*4
        a(f"v_cvt_pk_bf16_f32 v{pm}, v{b0}, v{b0+1}")
        a(f"v_cvt_pk_bf16_f32 v{pm+1}, v{b0+2}, v{b0+3}")
        a(f"v_mov_b32 v{pm+2}, 0"); a(f"v_mov_b32 v{pm+3}, 0")
        a(f"v_cvt_pk_bf16_f32 v{px}, v{b0+4}, v{b0+5}")
        a(f"v_cvt_pk_bf16_f32 v{px+1}, v{b0+6}, v{b0+7}")
        if qt == 1:
            a(f"v_cvt_pk_bf16_f32 v{px+2}, v{b0+8}, v{b0+9}")
            a(f"v_cvt_pk_bf16_f32 v{px+3}, v{b0+10}, v{b0+11}")
        else:
            a(f"v_mov_b32 v{px+2}, 0"); a(f"v_mov_b32 v{px+3}, 0")
    a("s_waitcnt vmcnt(0)")
    a("s_nop 1")
    for qt in qts:
        px = PX + 8*qt; pm = px + 4
        for et in range(8):
            acc = vr(O+(qt*8+et)*4, 4)
            a(f"v_mfma_f32_16x16x32_bf16 {acc}, {vr(V+4*et,4)}, {vr(px,4)}, 0")
        for et in range(8):
            acc = vr(O+(qt*8+et)*4, 4)
            a(f"v_mfma_f32_16x16x32_bf16 {acc}, {vr(VM+4*et,4)}, {vr(pm,4)}, {acc}")
    a("s_nop 7")
    a("s_lshl_b32 s16, s13, 18")
    a("s_lshl_b32 s17, s14, 12")
    a("s_add_u32 s16, s16, s17")
    a(f"s_add_u32 s16, s16, {OFF_OF}")
    a("s_add_u32 s18, s4, s16"); a("s_addc_u32 s19, s5, 0")
    for qt in qts:
        a(f"v_add_u32 v4, {qt*131072}, v3")
        for w in range(4):
            t0 = O + (qt*8+2*w)*4; t1 = t0+4
            d = 184 + w*4
            a(f"v_cvt_pk_bf16_f32 v{d}, v{t0}, v{t0+1}")
            a(f"v_cvt_pk_bf16_f32 v{d+1}, v{t0+2}, v{t0+3}")
            a(f"v_cvt_pk_bf16_f32 v{d+2}, v{t1}, v{t1+1}")
            a(f"v_cvt_pk_bf16_f32 v{d+3}, v{t1+2}, v{t1+3}")
            a(f"global_store_dwordx4 v4, {vr(d,4)}, s[18:19] offset:{w*1024}{sc}")
        a("s_nop 1")

def gen_attn(a):
    name = "attn_kernel"
    a.begin(name)
    a("s_cmp_ge_u32 s2, 512")
    a("s_cbranch_scc1 ATT_END")
    load_ptr(a, 4, "ws")
    a("v_lshrrev_b32 v1, 6, v0")
    a("v_and_b32 v2, 63, v0")
    a("s_nop 0")
    a("v_readfirstlane_b32 s3, v1")
    a("s_lshl_b32 s12, s2, 2")
    a("s_add_u32 s12, s12, s3")
    a("s_lshr_b32 s13, s12, 5")
    a("s_and_b32 s14, s12, 31")
    a("v_lshlrev_b32 v3, 4, v2")
    a("s_waitcnt lgkmcnt(0)")
    attn_body(a, "ATT")
    a.label("ATT_END")
    a.end(name, 208, 208)
```

```python
from common import *
from sched import LdsSB
import os
LDS_WO = 0
LDS_MEMS = 131072
LDS_SC = LDS_MEMS + 8192
LDS_PB = LDS_SC + 9216
LDS_OX = LDS_PB + 2048
CHAIN_LDS = LDS_OX + 4096

SCALE = 0x3db504f3
LOG2E = 0x3fb8aa3b
KX, VX = 96, 104
PROF = int(os.environ.get("PROF", "0"))
DBGMEM = int(os.environ.get("DBGMEM", "0"))
TL = int(os.environ.get("TL", "0"))
def tl(a, i):
    if TL:
        a(f"s_memrealtime s[{80+2*i}:{81+2*i}]")
        a("s_waitcnt lgkmcnt(0)")

OFF_MEMH = OFF_MEM + 65536

def stamp(a, i):
    if not PROF: return
    a("s_memrealtime s[40:41]" if PROF == 2 else "s_memtime s[40:41]")
    a("s_waitcnt lgkmcnt(0)")
    a("s_sub_u32 s43, s40, s42")
    a(f"s_add_u32 s{50+i}, s{50+i}, s43")
    a("s_mov_b32 s42, s40")
    if PROF == 2:
        a("s_cmp_eq_u32 s7, 30")
        a(f"s_cselect_b32 s{60+i}, s40, s{60+i}")

FUSED = False
def kvflag_poll(a, lab, t=112):
    a(f"v_and_b32 v{t}, 15, v2")
    a(f"v_lshlrev_b32 v{t}, 2, v{t}")
    a(f"v_add_u32 v{t}, s34, v{t}")
    a.label(lab)
    a(f"global_load_dword v{t+1}, v{t}, s[4:5] sc1")
    a("s_waitcnt vmcnt(0)")
    a(f"v_cmp_eq_u32 vcc, 0, v{t+1}")
    a("s_and_b32 s25, vcc_lo, 0x6666")
    a(f"s_cbranch_scc1 {lab}")
    a("s_add_u32 s34, s34, 64")
def mflag_store(a, t=112):
    a(f"v_mov_b32 v{t}, s35")
    a(f"v_mov_b32 v{t+1}, 1")
    a("s_mov_b64 exec, 1")
    a(f"global_store_dword v{t}, v{t+1}, s[4:5] sc1")
    a("s_mov_b64 exec, -1")
    a("s_add_u32 s35, s35, 512")

def gen_chain(a, fused=False):
    global FUSED
    FUSED = fused
    name = "main_kernel" if fused else "chain_kernel"
    a.begin(name)
    a("s_cmp_ge_u32 s2, 256")
    a("s_cbranch_scc1 CH_END")
    a("s_and_b32 s3, s2, 7")
    a("s_cmp_lg_u32 s3, 0")
    a("s_cbranch_scc1 " + ("WK_START" if fused else "CH_END"))
    a("s_lshr_b32 s6, s2, 3")
    tl(a, 0)
    load_ptr(a, 4, "ws")
    load_ptr(a, 8, "mem0")
    load_ptr(a, 28, "dbg")
    a("v_lshrrev_b32 v1, 6, v0")
    a("v_and_b32 v2, 63, v0")
    a("s_nop 0")
    a("v_readfirstlane_b32 s3, v1")
    a("v_lshlrev_b32 v3, 4, v2")
    a("s_getreg_b32 s24, hwreg(HW_REG_XCC_ID)")
    a("s_and_b32 s24, s24, 15")
    a("s_add_u32 s24, s24, 1")
    a("s_waitcnt lgkmcnt(0)")
    a("s_lshl_b32 s25, s6, 2")
    a("v_mov_b32 v4, s25")
    a("v_mov_b32 v5, s24")
    a("v_cmp_eq_u32 vcc, 0, v0")
    a("s_and_saveexec_b64 s[30:31], vcc")
    a("s_cbranch_execz CH_NOPUB")
    a("global_store_dword v4, v5, s[28:29] sc0 sc1")
    a.label("CH_NOPUB")
    a("s_mov_b64 exec, s[30:31]")
    a("s_lshl_b32 s25, s6, 17")
    a("s_lshl_b32 s26, s3, 15")
    a("s_add_u32 s25, s25, s26")
    a(f"s_add_u32 s25, s25, {OFF_WOF}")
    a("s_add_u32 s30, s4, s25"); a("s_addc_u32 s31, s5, 0")
    a("v_add_u32 v4, s26, v3")
    for blk in range(2):
        for i in range(16):
            a(f"global_load_dwordx4 {vr(16+i*4,4)}, v3, s[30:31] offset:{(i&3)*1024}")
            if (i & 3) == 3:
                a("s_add_u32 s30, s30, 4096"); a("s_addc_u32 s31, s31, 0")
        for i in range(16):
            a(f"s_waitcnt vmcnt({15-i})")
            a(f"ds_write_b128 v4, {vr(16+i*4,4)} offset:{(blk*16+i)*1024}")
        a("s_waitcnt lgkmcnt(0)")
    a("s_lshl_b32 s25, s6, 17")
    a("s_lshl_b32 s26, s3, 11")
    a("s_add_u32 s25, s25, s26")
    for m, off in enumerate((OFF_WQF, OFF_WKF, OFF_WVF)):
        a(f"s_add_u32 s26, s25, {off}")
        a("s_add_u32 s30, s4, s26"); a("s_addc_u32 s31, s5, 0")
        for kk in range(16):
            for t in range(2):
                idx = (((kk>>1)*2+t)*2+(kk&1))*4
                dst = ar(idx,4) if m == 0 else (ar(128+idx,4) if m == 1 else vr(128+idx,4))
                a(f"global_load_dwordx4 {dst}, v3, s[30:31] offset:{t*1024}")
            a("s_add_u32 s30, s30, 8192"); a("s_addc_u32 s31, s31, 0")
    a("s_waitcnt vmcnt(0)")
    tl(a, 1)
    a("s_mov_b32 s20, 0x00ff00ff"); a("s_mov_b32 s21, 0x00ff00ff")
    a("s_mov_b32 s22, 0x0ffc0ffc"); a("s_mov_b32 s23, 0x0ffc0ffc")
    a("s_mov_b32 s32, 0x0ffc0ffc"); a("s_mov_b32 s33, 0")
    a("s_mov_b32 s44, 0xff00ff00"); a("s_mov_b32 s45, 0xff00ff00")
    a("s_lshl_b32 s25, s3, 11")
    a("v_add_u32 v4, s25, v3")
    a(f"s_add_u32 s25, s25, {LDS_MEMS}")
    a("v_add_u32 v5, s25, v3")
    a(f"v_add_u32 v6, {LDS_MEMS}, v3")
    a("v_lshrrev_b32 v7, 4, v2")
    a("v_mul_u32_u24 v7, 144, v7")
    a("v_and_b32 v8, 15, v2")
    a("v_lshlrev_b32 v8, 4, v8")
    a("v_add_u32 v7, v7, v8")
    a("s_mul_i32 s25, s3, 2304")
    a(f"s_add_u32 s25, s25, {LDS_SC}")
    a("v_add_u32 v7, s25, v7")
    a("v_bfe_u32 v16, v2, 2, 2")
    a("v_and_b32 v17, 3, v2")
    a("v_bfe_u32 v18, v2, 4, 1")
    a("s_lshl_b32 s25, s3, 1")
    a("v_add_u32 v18, s25, v18")
    a("v_cmp_eq_u32 vcc, 3, v16")
    a("s_nop 1")
    a("v_cndmask_b32 v19, v16, 0, vcc")
    a("v_mul_u32_u24 v19, 576, v19")
    a("v_mul_u32_u24 v20, 144, v17")
    a("v_add_u32 v19, v19, v20")
    a("v_lshlrev_b32 v20, 4, v18")
    a("v_add_u32 v19, v19, v20")
    a(f"v_add_u32 v8, {LDS_SC}, v19")
    a("v_add_u32 v19, -1, v16")
    a("v_lshlrev_b32 v19, 3, v19")
    a("v_and_b32 v19, 31, v19")
    a("v_lshlrev_b32 v20, 5, v17")
    a("v_add_u32 v19, v19, v20")
    a("v_and_b32 v20, 1, v17")
    a("v_lshlrev_b32 v20, 3, v20")
    a("v_add_u32 v20, 128, v20")
    a("v_cmp_eq_u32 vcc, 0, v16")
    a("s_nop 1")
    a("v_cndmask_b32 v19, v19, v20, vcc")
    a("v_mul_u32_u24 v20, 144, v18")
    a("v_add_u32 v19, v19, v20")
    a(f"v_add_u32 v0, {LDS_PB}, v19")
    a("v_and_b32 v19, 7, v2")
    a("v_mul_u32_u24 v19, 144, v19")
    a("v_lshrrev_b32 v20, 4, v2")
    a("v_lshlrev_b32 v20, 5, v20")
    a("v_add_u32 v19, v19, v20")
    a(f"v_add_u32 v15, {LDS_PB}, v19")
    a("v_and_b32 v19, 7, v2")
    a("v_mul_u32_u24 v19, 144, v19")
    a("v_lshrrev_b32 v20, 4, v2")
    a("v_lshlrev_b32 v20, 2, v20")
    a("v_add_u32 v19, v19, v20")
    a(f"v_add_u32 v77, {LDS_PB+128}, v19")
    a("v_lshrrev_b32 v19, 5, v2")
    a("v_lshlrev_b32 v19, 8, v19")
    a("v_and_b32 v20, 7, v2")
    a("v_lshlrev_b32 v20, 5, v20")
    a("v_add_u32 v19, v19, v20")
    a("v_bfe_u32 v20, v2, 4, 1")
    a("v_lshlrev_b32 v20, 3, v20")
    a("v_add_u32 v19, v19, v20")
    a("s_lshl_b32 s25, s3, 9")
    a(f"s_add_u32 s25, s25, {LDS_OX}")
    a("v_add_u32 v9, s25, v19")
    a("v_bfe_u32 v21, v2, 2, 2")
    a("v_lshlrev_b32 v21, 1, v21")
    a("v_and_b32 v20, 1, v2")
    a("v_add_u32 v21, v21, v20")
    a("v_bfe_u32 v22, v2, 1, 1")
    a("v_lshrrev_b32 v19, 5, v2")
    a("v_lshlrev_b32 v19, 9, v19")
    a("v_bfe_u32 v20, v2, 4, 1")
    a("v_lshlrev_b32 v20, 8, v20")
    a("v_add_u32 v19, v19, v20")
    a("v_lshlrev_b32 v20, 5, v21")
    a("v_add_u32 v19, v19, v20")
    a("v_lshlrev_b32 v20, 4, v22")
    a("v_add_u32 v19, v19, v20")
    a(f"v_add_u32 v10, {LDS_OX}, v19")
    a("v_mov_b32 v74, 0x44444444")
    a("v_mov_b32 v20, 0xeeeeeeee")
    a("v_cmp_eq_u32 vcc, 1, v22")
    a("s_nop 1")
    a("v_cndmask_b32 v74, v74, v20, vcc")
    a("v_bfe_u32 v19, v2, 1, 2")
    a("v_lshrrev_b32 v20, 4, v2")
    a("v_and_b32 v23, 1, v2")
    a("v_lshlrev_b32 v23, 4, v23")
    a("v_mov_b32 v24, 0x3f80")
    a("v_lshlrev_b32 v24, v23, v24")
    a("v_cmp_eq_u32 vcc, v19, v20")
    a("s_nop 1")
    a("v_cndmask_b32 v24, 0, v24, vcc")
    a("v_bfe_u32 v19, v2, 3, 1")
    a("v_cmp_eq_u32 vcc, 0, v19")
    a("s_nop 1")
    a("v_cndmask_b32 v72, 0, v24, vcc")
    a("v_cndmask_b32 v73, v24, 0, vcc")
    a("v_lshrrev_b32 v19, 4, v2")
    a("v_lshlrev_b32 v19, 8, v19")
    a("v_and_b32 v20, 7, v2")
    a("v_lshlrev_b32 v20, 4, v20")
    a("v_add_u32 v75, v19, v20")
    a("v_lshrrev_b32 v19, 5, v2")
    a("v_lshlrev_b32 v19, 7, v19")
    a("v_and_b32 v20, 15, v2")
    a("v_lshlrev_b32 v20, 3, v20")
    a("v_add_u32 v19, v19, v20")
    a("v_bfe_u32 v20, v2, 4, 1")
    a("v_lshlrev_b32 v20, 2, v20")
    a("v_add_u32 v76, v19, v20")
    a("s_lshl_b32 s25, s3, 13")
    a("v_add_u32 v11, s25, v3")
    a("v_add_u32 v1, 65536, v11")
    a("v_lshrrev_b32 v12, 3, v2")
    a("v_lshlrev_b32 v12, 14, v12")
    a("v_and_b32 v13, 7, v2")
    a("v_lshlrev_b32 v13, 4, v13")
    a("v_add_u32 v12, v12, v13")
    a("s_lshl_b32 s25, s6, 7")
    a("s_lshl_b32 s26, s3, 17")
    a("s_add_u32 s25, s25, s26")
    a("v_add_u32 v12, s25, v12")
    a("s_lshl_b32 s25, s6, 14")
    a("s_lshl_b32 s26, s3, 12")
    a("s_add_u32 s25, s25, s26")
    a("v_add_u32 v13, s25, v3")
    a("v_lshrrev_b32 v14, 5, v2")
    a("v_lshlrev_b32 v14, 8, v14")
    a("v_bfe_u32 v16, v2, 1, 1")
    a("v_lshlrev_b32 v16, 5, v16")
    a("v_add_u32 v14, v14, v16")
    a("v_bfe_u32 v16, v2, 4, 1")
    a("v_lshlrev_b32 v16, 4, v16")
    a("v_add_u32 v14, v14, v16")
    a("v_bfe_u32 v16, v2, 2, 1")
    a("v_lshlrev_b32 v16, 2, v16")
    a("v_add_u32 v14, v14, v16")
    a("s_lshr_b32 s25, s6, 3")
    a("s_lshl_b32 s25, s25, 11")
    a("s_lshl_b32 s26, s3, 9")
    a("s_add_u32 s25, s25, s26")
    a("s_bfe_u32 s26, s6, 0x20001")
    a("s_lshl_b32 s26, s26, 6")
    a("s_add_u32 s25, s25, s26")
    a("s_and_b32 s26, s6, 1")
    a("s_lshl_b32 s26, s26, 3")
    a("s_add_u32 s25, s25, s26")
    a("v_add_u32 v14, s25, v14")
    a("v_lshlrev_b32 v78, 10, v21")
    a("v_lshrrev_b32 v19, 4, v2")
    a("v_lshlrev_b32 v19, 5, v19")
    a("v_add_u32 v78, v78, v19")
    a("v_lshlrev_b32 v19, 2, v22")
    a("v_add_u32 v78, v78, v19")
    a("s_lshl_b32 s25, s3, 8")
    a("v_add_u32 v78, s25, v78")
    a("s_mov_b32 s38, 0x00550055"); a("s_mov_b32 s39, 0x00550055")
    a("s_lshl_b32 s25, s6, 13")
    a("s_lshl_b32 s26, s3, 11")
    a("s_add_u32 s25, s25, s26")
    a(f"s_add_u32 s26, s25, {OFF_KF}")
    a("s_add_u32 s12, s4, s26"); a("s_addc_u32 s13, s5, 0")
    a(f"s_add_u32 s26, s25, {OFF_VF}")
    a("s_add_u32 s14, s4, s26"); a("s_addc_u32 s15, s5, 0")
    a("s_lshl_b32 s25, s6, 12")
    a("s_lshl_b32 s26, s3, 10")
    a("s_add_u32 s25, s25, s26")
    a(f"s_add_u32 s26, s25, {OFF_KMF}")
    a("s_add_u32 s16, s4, s26"); a("s_addc_u32 s17, s5, 0")
    a(f"s_add_u32 s26, s25, {OFF_VMF}")
    a("s_add_u32 s18, s4, s26"); a("s_addc_u32 s19, s5, 0")
    add64_imm(a, 26, 4, OFF_MEM + 8192)
    q = " sc1" if fused else ""
    def pf_k():
        a(f"global_load_dwordx4 {vr(KX,4)}, v3, s[12:13]{q}")
        a(f"global_load_dwordx4 {vr(KX+4,4)}, v3, s[12:13] offset:1024{q}")
        a("s_add_u32 s12, s12, 262144"); a("s_addc_u32 s13, s13, 0")
    def pf_v():
        a(f"global_load_dwordx4 {vr(VX,4)}, v3, s[14:15]{q}")
        a(f"global_load_dwordx4 {vr(VX+4,4)}, v3, s[14:15] offset:1024{q}")
        a("s_add_u32 s14, s14, 262144"); a("s_addc_u32 s15, s15, 0")
    if fused:
        a("s_lshl_b32 s34, s6, 9")
        a(f"s_add_u32 s34, s34, {F_QKV}")
        a("s_lshl_b32 s35, s6, 4")
        a("s_lshl_b32 s25, s3, 2")
        a("s_add_u32 s35, s35, s25")
        a(f"s_add_u32 s35, s35, {F_M}")
        kvflag_poll(a, "CH_KVF0")
        tl(a, 2)
    pf_k(); pf_v()
    if PROF:
        for i in range(10): a(f"s_mov_b32 s{50+i}, 0")
        a("s_mov_b32 s70, 0"); a("s_mov_b32 s71, 0")
        a("s_memtime s[40:41]"); a("s_waitcnt lgkmcnt(0)"); a("s_mov_b32 s42, s40")
    a.label("CH_MODE")
    a("v_and_b32 v16, 31, v2")
    a("v_lshlrev_b32 v16, 2, v16")
    a("global_load_dword v17, v16, s[28:29] sc0 sc1")
    a("s_waitcnt vmcnt(0)")
    a("v_cmp_eq_u32 vcc, 0, v17")
    a("s_cbranch_vccnz CH_MODE")
    a("v_cmp_ne_u32 vcc, s24, v17")
    a("s_mov_b32 s7, 0")
    a("s_barrier")
    a("s_cbranch_vccnz CH_SLOW_LOOP")
    for fast in (True, False):
        gen_loop(a, fast, pf_k, pf_v)
    a.label("CH_FIN")
    if TL:
        tl(a, 3)
        a("s_lshl_b32 s25, s6, 2"); a("s_add_u32 s25, s25, s3"); a("s_lshl_b32 s25, s25, 5")
        a(f"s_add_u32 s25, s25, {4*MB+131072}")
        a("v_mov_b32 v16, s25")
        for i in range(4):
            a(f"v_mov_b32 v17, s{80+2*i}")
            a(f"global_store_dword v16, v17, s[4:5] offset:{4*i}")
    if fused:
        a("s_waitcnt vmcnt(0)")
        mflag_store(a)
    if PROF:
        a("s_lshl_b32 s25, s6, 2"); a("s_add_u32 s25, s25, s3"); a("s_lshl_b32 s25, s25, 6")
        a(f"s_add_u32 s25, s25, {4*MB+131072}")
        a("v_mov_b32 v16, s25")
        for i in range(10):
            a(f"v_mov_b32 v17, s{(60 if PROF==2 else 50)+i}")
            a(f"global_store_dword v16, v17, s[4:5] offset:{4*i}")
        for i in range(2):
            a(f"v_mov_b32 v17, s{70+i}")
            a(f"global_store_dword v16, v17, s[4:5] offset:{40+4*i}")
    if fused:
        a("s_endpgm")
        from k_work import gen_worker
        gen_worker(a)
    a.label("CH_END")
    a.end(name, 512, 256)

def gen_loop(a, fast, pf_k, pf_v):
    tag = "FAST" if fast else "SLOW"
    sc = "" if fast else " sc1"
    MF = 16
    AQ, AK, AV = 48, 56, 64
    T = 112
    IDX = "v74"
    L = LdsSB(a)
    a.label(f"CH_{tag}_LOOP")
    stamp(a, 0)
    a("s_cmp_eq_u32 s7, 0")
    a(f"s_cbranch_scc1 CH_{tag}_FIRST")
    for _ in range(int(os.environ.get("MDELAY", "0"))): a("s_nop 15")
    a.label(f"CH_{tag}_MPOLL")
    if PROF: a("s_add_u32 s71, s71, 1")
    a("global_load_dwordx4 v[112:115], v4, s[8:9] sc1")
    a("global_load_dwordx4 v[116:119], v4, s[8:9] offset:1024 sc1")
    for i in range(12): a(f"v_mov_b64 {vr(AQ+2*i,2)}, 0")
    a("s_waitcnt vmcnt(0)")
    a("v_max3_u32 v120, v112, v113, v114")
    a("v_max3_u32 v121, v115, v116, v117")
    a("v_max3_u32 v120, v120, v118, v119")
    a("v_max_u32 v120, v120, v121")
    a("v_cmp_eq_u32 vcc, -1, v120")
    a(f"s_cbranch_vccnz CH_{tag}_MPOLL")
    a(f"s_branch CH_{tag}_GOT")
    a.label(f"CH_{tag}_FIRST")
    for u in range(2):
        for G in range(4):
            a(f"global_load_dword v{112+4*u+G}, v78, s[8:9] offset:{u*128+G*8}")
    for i in range(12): a(f"v_mov_b64 {vr(AQ+2*i,2)}, 0")
    a("s_waitcnt vmcnt(0)")
    a.label(f"CH_{tag}_GOT")
    stamp(a, 1)
    a("ds_write_b128 v5, v[112:115]")
    a("ds_write_b128 v5, v[116:119] offset:1024")
    a("s_waitcnt lgkmcnt(0)")
    a("s_barrier")
    for i in range(8):
        L.issue(f"ds_read_b128 {vr(MF+4*i,4)}, v6 offset:{i*1024}", ("m", i))
    stamp(a, 2)
    if FUSED:
        a("s_cmp_eq_u32 s7, 0")
        a(f"s_cbranch_scc1 CH_{tag}_NOMF")
        mflag_store(a, 120)
        a.label(f"CH_{tag}_NOMF")
    a("s_add_u32 s25, s7, 3"); a("s_and_b32 s25, s25, 3"); a("s_lshl_b32 s25, s25, 13")
    a(f"s_add_u32 s25, s25, {OFF_MEM}")
    a("s_add_u32 s36, s4, s25"); a("s_addc_u32 s37, s5, 0")
    a("v_mov_b32 v120, -1")
    a("s_mov_b64 exec, s[38:39]")
    a(f"global_store_dword v14, v120, s[36:37]{sc}")
    a("s_mov_b64 exec, -1")
    a("s_lshr_b32 s30, s7, 2"); a("s_and_b32 s30, s30, 1"); a("s_sub_u32 s31, 0, s30")
    for u in range(8):
        L.wait(("m", u))
        A = vr(MF+4*u, 4)
        for t in range(2):
            a(f"v_smfmac_f32_16x16x64_bf16 {vr(AQ+4*t,4)}, {A}, {ar((u*2+t)*8,8)}, {IDX}")
        for t in range(2):
            a(f"v_smfmac_f32_16x16x64_bf16 {vr(AK+4*t,4)}, {A}, {ar(128+(u*2+t)*8,8)}, {IDX}")
    stamp(a, 3)
    vstate = {"i": 0}
    def vnext(n):
        for _ in range(n):
            idx = vstate["i"]
            if idx >= 16: return
            u, t = idx >> 1, idx & 1
            a(f"v_smfmac_f32_16x16x64_bf16 {vr(AV+4*t,4)}, {vr(MF+4*u,4)}, {vr(128+(u*2+t)*8,8)}, {IDX}")
            vstate["i"] = idx + 1
    vnext(2)
    a("s_nop 1")
    for t in range(2):
        for e in range(2):
            a(f"v_add_f32 v{AQ+4*t+e}, v{AQ+4*t+e}, v{AQ+4*t+2+e}")
            a(f"v_add_f32 v{AK+4*t+e}, v{AK+4*t+e}, v{AK+4*t+2+e}")
        a(f"v_cvt_pk_bf16_f32 v{80+2*t}, v{AQ+4*t}, v{AQ+4*t+1}")
        a(f"v_cvt_pk_bf16_f32 v{81+2*t}, v{AK+4*t}, v{AK+4*t+1}")
        if t == 0: vnext(1)
    a("s_nop 1")
    a("v_mfma_f32_16x16x16_bf16 v[84:87], v[80:81], v[72:73], 0")
    a("v_mfma_f32_16x16x16_bf16 v[88:91], v[82:83], v[72:73], 0")
    vnext(2)
    a("s_nop 1")
    a("v_cvt_pk_bf16_f32 v92, v84, v85")
    a("v_cvt_pk_bf16_f32 v93, v86, v87")
    a("v_cvt_pk_bf16_f32 v94, v88, v89")
    a("v_cvt_pk_bf16_f32 v95, v90, v91")
    a("s_nop 1")
    a("v_mfma_f32_16x16x32_bf16 v[112:115], v[92:95], v[92:95], 0")
    a(f"v_mfma_f32_16x16x32_bf16 v[116:119], {vr(KX,4)}, v[92:95], 0")
    a(f"v_mfma_f32_16x16x32_bf16 v[120:123], {vr(KX+4,4)}, v[92:95], 0")
    a("s_mov_b64 exec, s[44:45]")
    a("global_store_dwordx4 v75, v[92:95], s[16:17]" + (" sc1" if FUSED else ""))
    a("s_mov_b64 exec, -1")
    vnext(2)
    a("s_mov_b64 exec, s[20:21]")
    L.issue("ds_write_b128 v7, v[112:115]")
    L.issue("ds_write_b128 v7, v[116:119] offset:576")
    L.issue("ds_write_b128 v7, v[120:123] offset:1152")
    a("s_mov_b64 exec, -1")
    a("s_cmp_eq_u32 s7, 63")
    a(f"s_cbranch_scc1 CH_{tag}_NOPFK")
    if FUSED:
        a("s_and_b32 s25, s7, 7")
        a("s_cmp_lg_u32 s25, 7")
        a(f"s_cbranch_scc1 CH_{tag}_KVOK")
        kvflag_poll(a, f"CH_{tag}_KVF", 84)
        a.label(f"CH_{tag}_KVOK")
    pf_k()
    a.label(f"CH_{tag}_NOPFK")
    vnext(2)
    L.waitall()
    a("s_barrier")
    stamp(a, 4)
    for w in range(4):
        L.issue(f"ds_read_b128 {vr(T+4*w,4)}, v8 offset:{w*2304}", ("s", w))
    BUF = [48, 56, 64, 80, 88]
    def wread(x):
        nt, i = x >> 1, x & 1
        b = BUF[x % 5]
        base = "v1" if i else "v11"
        L.issue(f"ds_read_b128 {vr(b,4)}, {base} offset:{nt*1024}", ("w", x))
        L.issue(f"ds_read_b128 {vr(b+4,4)}, {base} offset:{32768+nt*1024}", ("w", x))
    for x in range(2): wread(x)
    vnext(16)
    q = " sc1" if FUSED else ""
    fill = []
    for i in range(4): fill.append(f"v_mov_b64 {vr(MF+2*i,2)}, 0")
    for t in range(2):
        for e in range(2):
            fill.append(f"v_add_f32 v{AV+4*t+e}, v{AV+4*t+e}, v{AV+4*t+2+e}")
    for t in range(2):
        fill.append(f"v_cvt_pk_bf16_f32 v{80+2*t}, v{AV+4*t}, v{AV+4*t+1}")
        fill.append(f"v_mov_b32 v{81+2*t}, 0")
    fill.append("global_store_dword v76, v80, s[18:19]" + q)
    fill.append("global_store_dword v76, v82, s[18:19] offset:512" + q)
    for i in range(4, 16): fill.append(f"v_mov_b64 {vr(MF+2*i,2)}, 0")
    L.wait(("s", 3))
    S = T
    t0, t1, tm, tc = 124, 125, 126, 127
    vl = []
    for r in range(4):
        vl.append(f"v_add_f32 v{S+r}, v{S+r}, v{S+4+r}")
        vl.append(f"v_add_f32 v{S+8+r}, v{S+8+r}, v{S+12+r}")
    for r in range(4):
        vl.append(f"v_add_f32 v{S+r}, v{S+r}, v{S+8+r}")
    def rnd():
        vl.append(f"v_cvt_pk_bf16_f32 v{t0}, v{S}, v{S+1}")
        vl.append(f"v_cvt_pk_bf16_f32 v{t1}, v{S+2}, v{S+3}")
        vl.append(f"v_lshlrev_b32 v{S}, 16, v{t0}")
        vl.append(f"v_and_b32 v{S+1}, 0xffff0000, v{t0}")
        vl.append(f"v_lshlrev_b32 v{S+2}, 16, v{t1}")
        vl.append(f"v_and_b32 v{S+3}, 0xffff0000, v{t1}")
    rnd()
    for r in range(4): vl.append(f"v_mul_f32 v{S+r}, 0x{SCALE:08x}, v{S+r}")
    rnd()
    vl.append(f"v_mov_b32 v{tc}, 0xff800000")
    for r in range(4): vl.append(f"v_cndmask_b32 v{S+r}, v{tc}, v{S+r}, s[22:23]")
    vl.append(f"v_max3_f32 v{tm}, v{S}, v{S+1}, v{S+2}")
    vl.append(f"v_max_f32 v{tm}, v{tm}, v{S+3}")
    ctl = ["quad_perm:[1,0,3,2]", "quad_perm:[2,3,0,1]", "row_half_mirror", "row_mirror"]
    for c in ctl:
        vl.append("ZERO2")
        vl.append(f"v_max_f32_dpp v{tm}, v{tm}, v{tm} {c} row_mask:0xf bank_mask:0xf")
    vl.append(f"v_mov_b32 v{tc}, 0x{LOG2E:08x}")
    for r in range(4):
        vl.append(f"v_sub_f32 v{S+r}, v{S+r}, v{tm}")
        vl.append(f"v_mul_f32 v{S+r}, v{tc}, v{S+r}")
        vl.append(f"v_exp_f32 v{S+r}, v{S+r}")
    vl.append("s_nop 0")
    vl.append(f"v_add_f32 v{tm}, v{S}, v{S+1}")
    vl.append(f"v_add_f32 v{tc}, v{S+2}, v{S+3}")
    vl.append(f"v_add_f32 v{tm}, v{tm}, v{tc}")
    for c in ctl:
        vl.append("ZERO2")
        vl.append(f"v_add_f32_dpp v{tm}, v{tm}, v{tm} {c} row_mask:0xf bank_mask:0xf")
    vl.append(f"v_rcp_f32 v{tm}, v{tm}")
    vl.append("s_nop 0")
    for r in range(4): vl.append(f"v_mul_f32 v{S+r}, v{S+r}, v{tm}")
    vl.append(f"v_cvt_pk_bf16_f32 v{t0}, v{S}, v{S+1}")
    vl.append(f"v_cvt_pk_bf16_f32 v{t1}, v{S+2}, v{S+3}")
    for ins in vl:
        if ins == "ZERO2":
            for _ in range(2): a(fill.pop(0))
        else:
            a(ins)
    a("s_mov_b64 exec, s[32:33]")
    L.issue(f"ds_write_b64 v0, v[{t0}:{t1}]")
    a("s_mov_b64 exec, -1")
    wread(2)
    while fill: a(fill.pop(0))
    a("s_add_u32 s16, s16, 131072"); a("s_addc_u32 s17, s17, 0")
    a("s_add_u32 s18, s18, 131072"); a("s_addc_u32 s19, s19, 0")
    L.waitall()
    a("s_barrier")
    L.issue("ds_read_b128 v[112:115], v15", "px")
    L.issue("ds_read_b32 v116, v77", "pm")
    a("v_mov_b32 v117, 0")
    a("s_cmp_eq_u32 s7, 63")
    a("s_cbranch_scc1 CH_FIN")
    L.wait("px", "pm")
    stamp(a, 5)
    for t in range(2):
        a(f"v_mfma_f32_16x16x32_bf16 {vr(88+4*t,4)}, {vr(VX+4*t,4)}, v[112:115], 0")
    for t in range(2):
        a(f"v_mfma_f32_16x16x16_bf16 {vr(88+4*t,4)}, {vr(80+2*t,2)}, v[116:117], {vr(88+4*t,4)}")
    pf_v()
    a("s_nop 5")
    a("v_cvt_pk_bf16_f32 v120, v88, v89")
    a("v_cvt_pk_bf16_f32 v122, v90, v91")
    a("v_cvt_pk_bf16_f32 v121, v92, v93")
    a("v_cvt_pk_bf16_f32 v123, v94, v95")
    a("s_mov_b64 exec, s[20:21]")
    L.issue("ds_write2_b64 v9, v[120:121], v[122:123] offset0:0 offset1:2")
    a("s_mov_b64 exec, -1")
    for x in range(3, 5): wread(x)
    L.waitall()
    a("s_barrier")
    for i in range(2):
        L.issue(f"ds_read_b128 {vr(T+4*i,4)}, v10 offset:{i*1024}", ("o", i))
    stamp(a, 6)
    WA = MF
    a("s_and_b32 s25, s7, 3")
    a("s_lshl_b32 s25, s25, 19")
    a(f"s_add_u32 s25, s25, {OFF_P}")
    a("s_add_u32 s10, s4, s25"); a("s_addc_u32 s11, s5, 0")
    def pstore(p):
        A = WA + 8*p; B = A + 4
        a(f"v_add_f32 v{A}, v{A}, v{A+2}")
        a(f"v_add_f32 v{A+1}, v{A+1}, v{A+3}")
        a(f"v_add_f32 v{A+2}, v{B}, v{B+2}")
        a(f"v_add_f32 v{A+3}, v{B+1}, v{B+3}")
        for r in range(4):
            a(f"v_and_or_b32 v{A+r}, v{A+r}, -2, s30")
        if p: a(f"v_add_u32 v{A+4}, {p*4096}, v12")
        a(f"global_store_dwordx4 v{12 if p == 0 else A+4}, {vr(A,4)}, s[10:11]{sc}")
    for x in range(16):
        nt, i = x >> 1, x & 1
        b = BUF[x % 5]
        if x < 2: L.wait(("o", i), ("w", x))
        else: L.wait(("w", x))
        a(f"v_smfmac_f32_16x16x64_bf16 {vr(WA+4*nt,4)}, {vr(T+4*i,4)}, {vr(b,8)}, {IDX}")
        if x + 5 < 16: wread(x + 5)
        if x % 4 == 1 and x >= 4:
            pstore(x//4 - 1)
    a("s_nop 7")
    pstore(3)
    stamp(a, 7)
    for _ in range(int(os.environ.get("PDELAY", "4"))): a("s_nop 15")
    a.label(f"CH_{tag}_PPOLL")
    if PROF: a("s_add_u32 s70, s70, 1")
    for i in range(4):
        a(f"global_load_dwordx4 {vr(16+4*i,4)}, v13, s[10:11] offset:{i*1024} sc1")
    a("s_waitcnt vmcnt(0)")
    for i in range(8): a(f"v_bitop3_b32 v{32+i}, v{16+2*i}, v{17+2*i}, s31 bitop3:0x7e")
    a("v_or3_b32 v32, v32, v33, v34"); a("v_or3_b32 v35, v35, v36, v37"); a("v_or3_b32 v32, v32, v38, v39"); a("v_or_b32 v32, v32, v35")
    a("v_and_b32 v32, 1, v32")
    a("v_cmp_ne_u32 vcc, 0, v32")
    a(f"s_cbranch_vccnz CH_{tag}_PPOLL")
    stamp(a, 8)
    for c in range(4):
        a(f"v_add_f32 v{16+c}, v{16+c}, v{20+c}")
        a(f"v_add_f32 v{24+c}, v{24+c}, v{28+c}")
    for c in range(4):
        a(f"v_add_f32 v{16+c}, v{16+c}, v{24+c}")
    a("s_nop 0")
    a("v_permlane32_swap_b32 v16, v18"); a("v_permlane32_swap_b32 v17, v19")
    a("s_nop 0")
    a("v_add_f32 v16, v16, v18"); a("v_add_f32 v17, v17, v19")
    a("s_nop 1")
    a("v_permlane16_swap_b32 v16, v17")
    a("s_nop 0")
    a("v_add_f32 v16, v16, v17")
    a("s_nop 1")
    a("v_add_f32_dpp v16, v16, v16 row_ror:8 row_mask:0xf bank_mask:0xf")
    a("s_nop 1")
    a("v_mov_b32_dpp v17, v16 quad_perm:[1,1,3,3] row_mask:0xf bank_mask:0xf")
    a("v_cvt_pk_bf16_f32 v16, v16, v17")
    a("v_min_u32 v16, -2, v16")
    a("s_mov_b64 exec, s[38:39]")
    a(f"global_store_dword v14, v16, s[26:27]{sc}")
    if DBGMEM:
        a("s_lshl_b32 s25, s7, 13")
        a(f"s_add_u32 s25, s25, {OFF_MEMH + 8192}")
        a("s_add_u32 s36, s4, s25"); a("s_addc_u32 s37, s5, 0")
        a(f"global_store_dword v14, v16, s[36:37]")
    a("s_mov_b64 exec, -1")
    a("s_mov_b64 s[8:9], s[26:27]")
    a("s_add_u32 s7, s7, 1")
    a("s_add_u32 s25, s7, 1")
    a("s_and_b32 s25, s25, 3")
    a("s_lshl_b32 s25, s25, 13")
    a(f"s_add_u32 s25, s25, {OFF_MEM}")
    a("s_add_u32 s26, s4, s25"); a("s_addc_u32 s27, s5, 0")
    a(f"s_branch CH_{tag}_LOOP")
```

```python
from common import *
OFF_IDX = OFF_MOE
OFF_H   = OFF_MOE + 4096
LOG2E = 0x3fb8aa3b

def topk_body(a, pre, lds_base=0, sc="", flag=None):
    a("v_lshlrev_b32 v3, 5, v0")
    a(f"v_add_u32 v3, {OFF_R}, v3")
    a("global_load_dwordx4 v[8:11], v3, s[4:5]")
    a("global_load_dwordx4 v[12:15], v3, s[4:5] offset:16")
    a("v_lshlrev_b32 v4, 3, v0")
    a("v_sub_u32 v4, 2047, v4")
    a("v_lshrrev_b32 v5, 6, v0")
    a("v_lshlrev_b32 v5, 2, v5")
    a(f"v_add_u32 v5, {lds_base}, v5")
    a(f"v_mov_b32 v6, {lds_base}")
    a("s_waitcnt vmcnt(0)")
    for i in range(8):
        a(f"v_ashrrev_i32 v16, 31, v{8+i}")
        a(f"v_or_b32 v16, 0x80000000, v16")
        a(f"v_xor_b32 v{8+i}, v{8+i}, v16")
        a(f"v_and_b32 v{8+i}, 0xffff0000, v{8+i}")
        a(f"v_subrev_u32 v16, {i}, v4")
        a(f"v_or_b32 v{8+i}, v{8+i}, v16")
    for it in range(8):
        a("v_max3_u32 v16, v8, v9, v10")
        a("v_max3_u32 v16, v16, v11, v12")
        a("v_max3_u32 v16, v16, v13, v14")
        a("v_max_u32 v16, v16, v15")
        wave_reduce(a, 16, 17, "maxu")
        a(f"ds_write_b32 v5, v16 offset:{it*16}")
        a("s_waitcnt lgkmcnt(0)")
        a("s_barrier")
        a(f"ds_read_b128 v[20:23], v6 offset:{it*16}")
        a("s_waitcnt lgkmcnt(0)")
        a("v_max3_u32 v16, v20, v21, v22")
        a("v_max_u32 v16, v16, v23")
        a(f"v_mov_b32 v{24+it}, v16")
        for i in range(8):
            a(f"v_cmp_eq_u32 vcc, v16, v{8+i}")
            a("s_nop 1")
            a(f"v_cndmask_b32 v{8+i}, v{8+i}, 0, vcc")
    for it in range(8):
        a(f"v_and_b32 v{24+it}, 0x7ff, v{24+it}")
        a(f"v_sub_u32 v{24+it}, 2047, v{24+it}")
    a(f"v_mov_b32 v3, {OFF_IDX}")
    a("v_cmp_eq_u32 vcc, 0, v0")
    a("s_and_saveexec_b64 s[14:15], vcc")
    a(f"s_cbranch_execz {pre}_TKSKIP")
    a("global_store_dwordx4 v3, v[24:27], s[4:5]" + sc)
    a("global_store_dwordx4 v3, v[28:31], s[4:5] offset:16" + sc)
    if flag: flag(a)
    a.label(f"{pre}_TKSKIP")
    a("s_mov_b64 exec, s[14:15]")

def moe1_body(a, pre, lds_base=0, sc="", flag=None):
    load_ptr(a, 6, "wg")
    load_ptr(a, 8, "wu")
    a("v_and_b32 v3, 7, v2")
    a("v_lshlrev_b32 v3, 2, v3")
    a(f"v_add_u32 v3, {OFF_IDX}, v3")
    a("global_load_dword v4, v3, s[4:5]" + sc)
    a("v_lshrrev_b32 v5, 4, v2")
    a("v_and_b32 v6, 15, v2")
    a("v_mul_u32_u24 v7, 28672, v5")
    a("v_lshlrev_b32 v6, 1, v6")
    a("v_add_u32 v7, v7, v6")
    a("s_mul_i32 s11, s3, 458752")
    a("s_lshl_b32 s12, s10, 5")
    a("s_add_u32 s11, s11, s12")
    a("v_add_u32 v7, s11, v7")
    for j in range(8):
        a(f"v_add_u32 v{8+j}, {j*3584}, v7")
    a("s_waitcnt vmcnt(0) lgkmcnt(0)")
    a("v_lshlrev_b32 v4, 10, v4")
    a("v_lshlrev_b32 v5, 4, v5")
    a("v_add_u32 v4, v4, v5")
    a("s_lshl_b32 s11, s3, 8")
    a("v_add_u32 v4, s11, v4")
    AF, GB, UB = 16, 32, 64
    for kk in range(4):
        a(f"global_load_dwordx4 {vr(AF+4*kk,4)}, v4, s[4:5] offset:{kk*64}")
    for kk in range(4):
        for j in range(8):
            a(f"global_load_ushort v{GB+8*kk+j}, v{8+j}, s[6:7]")
            a(f"global_load_ushort v{UB+8*kk+j}, v{8+j}, s[8:9]")
        a("s_add_u32 s6, s6, 114688"); a("s_addc_u32 s7, s7, 0")
        a("s_add_u32 s8, s8, 114688"); a("s_addc_u32 s9, s9, 0")
    a("s_waitcnt vmcnt(0)")
    for kk in range(4):
        for j in range(4):
            a(f"v_lshl_or_b32 v{GB+8*kk+j}, v{GB+8*kk+2*j+1}, 16, v{GB+8*kk+2*j}")
            a(f"v_lshl_or_b32 v{UB+8*kk+j}, v{UB+8*kk+2*j+1}, 16, v{UB+8*kk+2*j}")
    a("s_nop 1")
    for kk in range(4):
        a(f"v_mfma_f32_16x16x32_bf16 v[96:99], {vr(AF+4*kk,4)}, {vr(GB+8*kk,4)}, {'0' if kk==0 else 'v[96:99]'}")
        a(f"v_mfma_f32_16x16x32_bf16 v[100:103], {vr(AF+4*kk,4)}, {vr(UB+8*kk,4)}, {'0' if kk==0 else 'v[100:103]'}")
    a("s_nop 7")
    a("v_lshlrev_b32 v3, 4, v2")
    a(f"v_add_u32 v3, {lds_base}, v3")
    a("s_lshl_b32 s11, s3, 11")
    a("v_add_u32 v4, s11, v3")
    a("ds_write_b128 v4, v[96:99]")
    a("ds_write_b128 v4, v[100:103] offset:1024")
    a("s_waitcnt lgkmcnt(0)")
    a("s_barrier")
    a("s_cmp_lg_u32 s3, 0")
    a(f"s_cbranch_scc1 {pre}_M1DONE")
    for w in range(1, 4):
        a(f"ds_read_b128 {vr(8+8*w,4)}, v3 offset:{w*2048}")
        a(f"ds_read_b128 {vr(12+8*w,4)}, v3 offset:{w*2048+1024}")
    a("s_waitcnt lgkmcnt(0)")
    for w in range(1, 4):
        for r in range(8):
            a(f"v_add_f32 v{96+r}, v{96+r}, v{8+8*w+r}")
    for r in range(8): round_bf16(a, 96+r)
    a(f"v_mov_b32 v8, 0x{LOG2E:08x}")
    for r in range(4):
        a(f"v_mul_f32 v9, v8, v{96+r}")
        a("v_exp_f32 v9, -v9")
        a("s_nop 0")
        a("v_add_f32 v9, 1.0, v9")
        a("v_rcp_f32 v9, v9")
        a("s_nop 0")
        a(f"v_mul_f32 v{96+r}, v{96+r}, v9")
        round_bf16(a, 96+r)
        a(f"v_mul_f32 v{96+r}, v{96+r}, v{100+r}")
        a(f"v_cvt_pk_bf16_f32 v{96+r}, v{96+r}, v{96+r}")
    a("v_lshrrev_b32 v5, 4, v2")
    a("v_mul_u32_u24 v5, 14336, v5")
    a("v_and_b32 v6, 15, v2")
    a("v_lshlrev_b32 v6, 1, v6")
    a("v_add_u32 v5, v5, v6")
    a("s_lshl_b32 s12, s10, 5")
    a(f"s_add_u32 s12, s12, {OFF_H}")
    a("v_add_u32 v5, s12, v5")
    a("s_mov_b64 exec, 0xffffffff")
    for r in range(4):
        a(f"global_store_short v5, v{96+r}, s[4:5]" + sc)
        a("v_add_u32 v5, 3584, v5")
    if flag: flag(a)
    a("s_mov_b64 exec, -1")
    a.label(f"{pre}_M1DONE")

def moe2_body(a, pre, lds_base=0, sc="", flag=None):
    load_ptr(a, 6, "wd")
    a("v_lshrrev_b32 v5, 4, v2")
    a("v_and_b32 v6, 15, v2")
    a("v_lshlrev_b32 v7, 13, v5")
    a("v_lshlrev_b32 v6, 1, v6")
    a("v_add_u32 v7, v7, v6")
    a("s_mul_i32 s11, s3, 458752")
    a("s_lshl_b32 s12, s10, 5")
    a("s_add_u32 s11, s11, s12")
    a("v_add_u32 v7, s11, v7")
    for j in range(8):
        a(f"v_add_u32 v{8+j}, {j*1024}, v7")
    a("v_and_b32 v4, 7, v2")
    a("v_mul_u32_u24 v4, 3584, v4")
    a("v_lshlrev_b32 v5, 4, v5")
    a("v_add_u32 v4, v4, v5")
    a("s_mul_i32 s11, s3, 896")
    a(f"s_add_u32 s11, s11, {OFF_H}")
    a("v_add_u32 v4, s11, v4")
    a("s_waitcnt lgkmcnt(0)")
    AF, WB = 16, 72
    for kk in range(14):
        a(f"global_load_dwordx4 {vr(AF+4*kk,4)}, v4, s[4:5] offset:{kk*64}{sc}")
    for kk in range(14):
        for j in range(8):
            a(f"global_load_ushort v{WB+8*kk+j}, v{8+j}, s[6:7]")
        a("s_add_u32 s6, s6, 32768"); a("s_addc_u32 s7, s7, 0")
    a("s_waitcnt vmcnt(0)")
    for kk in range(14):
        for j in range(4):
            a(f"v_lshl_or_b32 v{WB+8*kk+j}, v{WB+8*kk+2*j+1}, 16, v{WB+8*kk+2*j}")
    a("s_nop 1")
    for kk in range(14):
        a(f"v_mfma_f32_16x16x32_bf16 v[8:11], {vr(AF+4*kk,4)}, {vr(WB+8*kk,4)}, {'0' if kk==0 else 'v[8:11]'}")
    a("s_nop 7")
    a("v_lshlrev_b32 v3, 4, v2")
    a(f"v_add_u32 v3, {lds_base}, v3")
    a("s_lshl_b32 s11, s3, 10")
    a("v_add_u32 v4, s11, v3")
    a("ds_write_b128 v4, v[8:11]")
    a("s_waitcnt lgkmcnt(0)")
    a("s_barrier")
    a("s_cmp_lg_u32 s3, 0")
    a(f"s_cbranch_scc1 {pre}_M2DONE")
    for w in range(1, 4):
        a(f"ds_read_b128 {vr(8+4*w,4)}, v3 offset:{w*1024}")
    a("v_lshrrev_b32 v5, 4, v2")
    a("v_and_b32 v5, 1, v5")
    a("v_lshlrev_b32 v5, 4, v5")
    a(f"v_add_u32 v5, {OFF_IDX}, v5")
    a("global_load_dwordx4 v[24:27], v5, s[4:5]" + sc)
    a("s_waitcnt vmcnt(0) lgkmcnt(0)")
    for w in range(1, 4):
        for r in range(4):
            a(f"v_add_f32 v{8+r}, v{8+r}, v{8+4*w+r}")
    a("v_and_b32 v6, 15, v2")
    a("v_lshlrev_b32 v6, 1, v6")
    a("s_lshl_b32 s12, s10, 5")
    a("v_add_u32 v6, s12, v6")
    for r in range(4):
        a(f"v_lshlrev_b32 v28, 2, v{24+r}")
        a(f"v_add_u32 v28, {OFF_R}, v28")
        a(f"global_load_dword v{32+r}, v28, s[4:5]")
        a(f"v_lshlrev_b32 v{40+r}, 10, v{24+r}")
        a(f"v_add_u32 v{40+r}, v{40+r}, v6")
        a(f"global_load_ushort v{36+r}, v{40+r}, s[4:5]")
    a("s_waitcnt vmcnt(0)")
    a(f"v_mov_b32 v29, 0x{LOG2E:08x}")
    for r in range(4):
        round_bf16(a, 8+r)
        a(f"v_mul_f32 v30, v29, v{32+r}")
        a("v_exp_f32 v30, -v30")
        a("s_nop 0")
        a("v_add_f32 v30, 1.0, v30")
        a("v_rcp_f32 v30, v30")
        a("s_nop 0")
        round_bf16(a, 30)
        a(f"v_mul_f32 v{8+r}, v{8+r}, v30")
        round_bf16(a, 8+r)
        a(f"v_lshlrev_b32 v{36+r}, 16, v{36+r}")
        a(f"v_add_f32 v{8+r}, v{8+r}, v{36+r}")
        a(f"v_cvt_pk_bf16_f32 v{8+r}, v{8+r}, v{8+r}")
    a("s_mov_b64 exec, 0xffffffff")
    for r in range(4):
        a(f"global_store_short v{40+r}, v{8+r}, s[4:5]" + sc)
    if flag: flag(a)
    a("s_mov_b64 exec, -1")
    a.label(f"{pre}_M2DONE")

def std_head(a, lim, endl):
    a(f"s_cmp_ge_u32 s2, {lim}")
    a(f"s_cbranch_scc1 {endl}")
    load_ptr(a, 4, "ws")
    a("v_lshrrev_b32 v1, 6, v0")
    a("v_and_b32 v2, 63, v0")
    a("s_nop 0")
    a("v_readfirstlane_b32 s3, v1")
    a("s_waitcnt lgkmcnt(0)")

def gen_moe(a):
    a.begin("topk_kernel"); std_head(a, 1, "TK_END"); topk_body(a, "TK"); a.label("TK_END"); a.end("topk_kernel", 64, 64)
    a.begin("moe1_kernel"); std_head(a, 112, "M1_END"); a("s_mov_b32 s10, s2"); moe1_body(a, "M1"); a.label("M1_END"); a.end("moe1_kernel", 128, 128)
    a.begin("moe2_kernel"); std_head(a, 32, "M2_END"); a("s_mov_b32 s10, s2"); moe2_body(a, "M2"); a.label("M2_END"); a.end("moe2_kernel", 192, 192)
```

```python
from common import *

def gen_prep(a):
    name = "prep_kernel"
    a.begin(name)
    M0 = False
    NLN, NPK, NIN, NFL, NM0 = 512, 256, 80, 17, (2 if M0 else 0)
    a(f"s_cmp_ge_u32 s2, {NLN+NPK+NIN+NFL+NM0}")
    a("s_cbranch_scc1 PREP_END")
    load_ptr(a, 4, "ws")
    a("v_lshrrev_b32 v1, 6, v0")
    a("v_and_b32 v2, 63, v0")
    a("s_nop 0")
    a("v_readfirstlane_b32 s3, v1")
    a(f"s_cmp_ge_u32 s2, {NLN}")
    a("s_cbranch_scc1 PREP_PACK")
    load_ptr(a, 6, "x")
    load_ptr(a, 8, "wr")
    a("s_lshl_b32 s10, s2, 2")
    a("s_add_u32 s10, s10, s3")
    a("v_lshlrev_b32 v3, 4, v2")
    a("s_lshl_b32 s11, s10, 10")
    a("v_add_u32 v4, s11, v3")
    a("s_waitcnt lgkmcnt(0)")
    a("global_load_dwordx4 v[8:11], v4, s[6:7]")
    a("global_load_dwordx4 v[12:15], v3, s[8:9]")
    a("s_waitcnt vmcnt(0)")
    for i in range(4):
        a(f"v_lshlrev_b32 v{16+2*i}, 16, v{8+i}")
        a(f"v_and_b32 v{17+2*i}, 0xffff0000, v{8+i}")
        a(f"v_lshlrev_b32 v{24+2*i}, 16, v{12+i}")
        a(f"v_and_b32 v{25+2*i}, 0xffff0000, v{12+i}")
    a("v_add_f32 v32, v16, v17")
    for i in range(2, 8):
        a(f"v_add_f32 v32, v32, v{16+i}")
    wave_reduce(a, 32, 33)
    a("v_mul_f32 v32, 0x3b000000, v32")
    a("v_sub_f32 v34, v16, v32")
    a("v_mul_f32 v35, v34, v34")
    for i in range(1, 8):
        a(f"v_sub_f32 v34, v{16+i}, v32")
        a("v_fmac_f32 v35, v34, v34")
    wave_reduce(a, 35, 33)
    a("v_mul_f32 v35, 0x3b000000, v35")
    round_bf16(a, 35)
    a("v_add_f32 v35, 0x3727c5ac, v35")
    round_bf16(a, 35)
    a("v_sqrt_f32 v35, v35")
    a("s_nop 0")
    round_bf16(a, 35)
    a("v_rcp_f32 v35, v35")
    round_bf16(a, 32)
    for i in range(8):
        a(f"v_sub_f32 v{16+i}, v{16+i}, v32")
    for i in range(4):
        a(f"v_cvt_pk_bf16_f32 v{8+i}, v{16+2*i}, v{17+2*i}")
    for i in range(4):
        a(f"v_lshlrev_b32 v{16+2*i}, 16, v{8+i}")
        a(f"v_and_b32 v{17+2*i}, 0xffff0000, v{8+i}")
    for i in range(8):
        a(f"v_mul_f32 v{16+i}, v{16+i}, v35")
    for i in range(4):
        a(f"v_cvt_pk_bf16_f32 v{8+i}, v{16+2*i}, v{17+2*i}")
    for i in range(4):
        a(f"v_lshlrev_b32 v{16+2*i}, 16, v{8+i}")
        a(f"v_and_b32 v{17+2*i}, 0xffff0000, v{8+i}")
    a("v_mul_f32 v36, v16, v24")
    for i in range(1, 8):
        a(f"v_fmac_f32 v36, v{16+i}, v{24+i}")
    wave_reduce(a, 36, 33)
    round_bf16(a, 36)
    a(f"v_add_u32 v5, {OFF_XN}, v4")
    a("global_store_dwordx4 v5, v[8:11], s[4:5]")
    a("s_lshr_b32 s12, s10, 4")
    a("s_and_b32 s13, s10, 15")
    a("s_lshl_b32 s12, s12, 14")
    a("s_lshl_b32 s13, s13, 4")
    a("s_add_u32 s12, s12, s13")
    a(f"s_add_u32 s12, s12, {OFF_XNF}")
    a("v_lshlrev_b32 v5, 8, v2")
    a("v_add_u32 v5, s12, v5")
    a("global_store_dwordx4 v5, v[8:11], s[4:5]")
    a("s_lshl_b32 s12, s10, 2")
    a(f"s_add_u32 s12, s12, {OFF_R}")
    a("v_mov_b32 v5, s12")
    a("v_cmp_eq_u32 vcc, 0, v2")
    a("s_and_saveexec_b64 s[14:15], vcc")
    a("global_store_dword v5, v36, s[4:5]")
    a("s_endpgm")
    a.label("PREP_PACK")
    a(f"s_cmp_ge_u32 s2, {NLN+NPK}")
    a("s_cbranch_scc1 PREP_INIT")
    a(f"s_sub_u32 s10, s2, {NLN}")
    a("s_lshl_b32 s10, s10, 2")
    a("s_add_u32 s10, s10, s3")
    a("v_and_b32 v3, 15, v2")
    a("v_lshrrev_b32 v4, 4, v2")
    a("s_cmp_ge_u32 s10, 768")
    a("s_cbranch_scc1 PREP_PACK_WO")
    a("s_lshr_b32 s11, s10, 8")
    a("s_lshl_b32 s12, s11, 3")
    a("s_add_u32 s12, s12, 16")
    a("s_load_dwordx2 s[6:7], s[0:1], s12")
    a("s_and_b32 s13, s10, 255")
    a("s_lshl_b32 s14, s13, 5")
    a("v_lshlrev_b32 v5, 1, v3")
    a("v_add_u32 v5, s14, v5")
    a("v_lshlrev_b32 v6, 16, v4")
    a("v_add_u32 v5, v5, v6")
    for j in range(8):
        a(f"v_add_u32 v{8+j}, {j*8192}, v5")
    a("s_lshr_b32 s14, s13, 3")
    a("s_and_b32 s15, s13, 7")
    a("s_lshl_b32 s14, s14, 17")
    a("s_lshl_b32 s15, s15, 10")
    a("s_add_u32 s14, s14, s15")
    a("s_lshl_b32 s15, s11, 22")
    a("s_add_u32 s14, s14, s15")
    a(f"s_add_u32 s14, s14, {OFF_WQF}")
    a("v_lshlrev_b32 v7, 4, v2")
    a("v_add_u32 v7, s14, v7")
    a("s_mov_b32 s16, 262144")
    a("s_mov_b32 s17, 8192")
    a("s_branch PREP_PACK_LOOP")
    a.label("PREP_PACK_WO")
    load_ptr(a, 6, "Wo")
    a("s_sub_u32 s10, s10, 768")
    a("s_lshr_b32 s13, s10, 1")
    a("s_and_b32 s15, s10, 1")
    a("s_lshl_b32 s14, s13, 15")
    a("s_lshl_b32 s11, s15, 9")
    a("s_add_u32 s14, s14, s11")
    a("v_lshlrev_b32 v5, 1, v3")
    a("v_add_u32 v5, s14, v5")
    a("v_lshlrev_b32 v6, 12, v4")
    a("v_add_u32 v5, v5, v6")
    for j in range(8):
        pj = j if j < 4 else 16 + j - 4
        a(f"v_add_u32 v{8+j}, {pj*1024}, v5")
    a("s_lshl_b32 s14, s13, 15")
    a("s_lshl_b32 s15, s15, 14")
    a("s_add_u32 s14, s14, s15")
    a(f"s_add_u32 s14, s14, {OFF_WOF}")
    a("v_lshlrev_b32 v7, 4, v2")
    a("v_add_u32 v7, s14, v7")
    a("s_mov_b32 s16, 32")
    a("s_mov_b32 s17, 1024")
    a.label("PREP_PACK_LOOP")
    a("s_waitcnt lgkmcnt(0)")
    for rnd in range(2):
        for it in range(8):
            for j in range(8):
                a(f"global_load_ushort v{24+it*8+j}, v{8+j}, s[6:7]")
            a("s_add_u32 s6, s6, s16")
            a("s_addc_u32 s7, s7, 0")
        for it in range(8):
            a(f"s_waitcnt vmcnt({8*(7-it) + it})")
            for j in range(4):
                a(f"v_lshl_or_b32 v{88+(it&1)*4+j}, v{24+it*8+2*j+1}, 16, v{24+it*8+2*j}")
            a(f"global_store_dwordx4 v7, {vr(88+(it&1)*4,4)}, s[4:5]")
            a("v_add_u32 v7, s17, v7")
        a("s_nop 1")
    a("s_endpgm")
    a.label("PREP_INIT")
    a(f"s_cmp_ge_u32 s2, {NLN+NPK+NIN}")
    a("s_cbranch_scc1 PREP_FLG")
    a(f"s_sub_u32 s10, s2, {NLN+NPK}")
    a("s_lshl_b32 s10, s10, 12")
    a("v_lshlrev_b32 v3, 4, v0")
    a("v_add_u32 v3, s10, v3")
    a("v_mov_b32 v8, -1")
    a("v_mov_b32 v9, -1")
    a("v_mov_b32 v10, -1")
    a("v_mov_b32 v11, -1")
    a("s_waitcnt lgkmcnt(0)")
    for p in range(8):
        a(f"v_add_u32 v4, {p*327680}, v3")
        a(f"v_add_u32 v5, {OFF_MEM}, v4")
        a(f"v_add_u32 v6, {OFF_P-524288}, v4")
        a(f"v_cmp_gt_u32 vcc, 524288, v4")
        a("s_nop 1")
        a("v_cndmask_b32 v5, v6, v5, vcc")
        if p == 0 and M0:
            a("v_cmp_le_u32 vcc, 8192, v4")
            a("s_and_saveexec_b64 s[14:15], vcc")
        a("global_store_dwordx4 v5, v[8:11], s[4:5]")
        if p == 0 and M0:
            a("s_mov_b64 exec, s[14:15]")
    a("s_endpgm")
    a.label("PREP_FLG")
    a(f"s_cmp_ge_u32 s2, {NLN+NPK+NIN+NFL}")
    a("s_cbranch_scc1 PREP_M0")
    a(f"s_sub_u32 s10, s2, {NLN+NPK+NIN}")
    a("s_lshl_b32 s10, s10, 12")
    a(f"s_add_u32 s10, s10, {OFF_FLG}")
    a("v_lshlrev_b32 v3, 4, v0")
    a("v_add_u32 v3, s10, v3")
    a("v_mov_b32 v8, 0"); a("v_mov_b32 v9, 0"); a("v_mov_b32 v10, 0"); a("v_mov_b32 v11, 0")
    a("s_waitcnt lgkmcnt(0)")
    a("global_store_dwordx4 v3, v[8:11], s[4:5]")
    a("s_endpgm")
    a.label("PREP_M0")
    load_ptr(a, 6, "mem0")
    a(f"s_sub_u32 s10, s2, {NLN+NPK+NIN+NFL}")
    a("s_lshl_b32 s10, s10, 8")
    a("v_add_u32 v3, s10, v0")
    a("v_lshrrev_b32 v4, 6, v3")
    a("v_lshlrev_b32 v4, 7, v4")
    a("v_bfe_u32 v5, v3, 3, 1")
    a("v_lshlrev_b32 v5, 6, v5")
    a("v_add_u32 v4, v4, v5")
    a("v_bfe_u32 v5, v3, 4, 2")
    a("v_lshlrev_b32 v5, 4, v5")
    a("v_add_u32 v4, v4, v5")
    a("v_and_b32 v5, 7, v3")
    a("v_lshlrev_b32 v5, 10, v5")
    a("v_add_u32 v4, v4, v5")
    a("v_lshlrev_b32 v6, 4, v3")
    a(f"v_add_u32 v6, {OFF_MEM}, v6")
    a("s_waitcnt lgkmcnt(0)")
    a("global_load_dwordx4 v[8:11], v4, s[6:7]")
    a("s_waitcnt vmcnt(0)")
    for i in range(4): a(f"v_min_u32 v{8+i}, -2, v{8+i}")
    a("global_store_dwordx4 v6, v[8:11], s[4:5]")
    a.label("PREP_END")
    a.end(name, 96, 96)
```

```python
from common import *

def gen_qkv(a):
    name = "qkv_kernel"
    a.begin(name)
    a("s_cmp_ge_u32 s2, 768")
    a("s_cbranch_scc1 QKV_END")
    load_ptr(a, 4, "ws")
    a("v_lshrrev_b32 v1, 6, v0")
    a("v_and_b32 v2, 63, v0")
    a("s_nop 0")
    a("v_readfirstlane_b32 s3, v1")
    a("s_and_b32 s10, s2, 7")
    a("s_lshr_b32 s11, s2, 3")
    qkv_body(a, "QKV", "", "QKV_END")
    a.label("QKV_END")
    a.end(name, 240, 240)

def qkv_body(a, pre, sc, endl):
    a("s_lshl_b32 s12, s10, 2")
    a("s_add_u32 s12, s12, s3")
    a("s_lshr_b32 s13, s11, 5")
    a("s_and_b32 s14, s11, 31")
    a("v_lshlrev_b32 v3, 4, v2")
    a("s_lshl_b32 s15, s11, 17")
    a(f"s_add_u32 s15, s15, {OFF_WQF}")
    a("s_lshl_b32 s16, s12, 16")
    a(f"s_add_u32 s16, s16, {OFF_XNF}")
    a("s_waitcnt lgkmcnt(0)")
    a("s_add_u32 s20, s4, s15"); a("s_addc_u32 s21, s5, 0")
    a("s_add_u32 s22, s4, s16"); a("s_addc_u32 s23, s5, 0")
    a("v_add_u32 v4, 4096, v3")
    for tt in range(4):
        a(f"v_add_u32 v{5+tt}, {tt*16384}, v3")
    NST = 4
    XB = [16 + 48*i for i in range(NST)]
    WB = [32 + 48*i for i in range(NST)]
    for i in range(128):
        a(f"v_accvgpr_write_b32 a{i}, 0")
    def loads(kk, buf):
        for et in range(8):
            a(f"global_load_dwordx4 {vr(WB[buf]+et*4,4)}, v{3 if et<4 else 4}, s[20:21] offset:{(et&3)*1024}")
        for tt in range(4):
            a(f"global_load_dwordx4 {vr(XB[buf]+tt*4,4)}, v{5+tt}, s[22:23] offset:{(kk&3)*1024}")
        a("s_add_u32 s20, s20, 8192"); a("s_addc_u32 s21, s21, 0")
        if (kk & 3) == 3:
            a("s_add_u32 s22, s22, 4096"); a("s_addc_u32 s23, s23, 0")
    def body(swap):
        for kk in range(NST-1): loads(kk, kk)
        for kk in range(16):
            buf = kk % NST
            if kk + NST-1 < 16:
                loads(kk+NST-1, (kk+NST-1) % NST)
                a(f"s_waitcnt vmcnt({12*(NST-1)})")
            else:
                a(f"s_waitcnt vmcnt({12*(15-kk)})")
            for tt in range(4):
                for et in range(8):
                    acc = ar((tt*8+et)*4, 4)
                    W = vr(WB[buf]+et*4, 4); X = vr(XB[buf]+tt*4, 4)
                    if swap:
                        a(f"v_mfma_f32_16x16x32_bf16 {acc}, {X}, {W}, {acc}")
                    else:
                        a(f"v_mfma_f32_16x16x32_bf16 {acc}, {W}, {X}, {acc}")
        a("s_nop 15")
        for i in range(128):
            a(f"v_accvgpr_read_b32 v{ACC+i}, a{i}")
    ACC = 16
    a("s_cmp_eq_u32 s13, 2")
    a(f"s_cbranch_scc1 {pre}_V")
    body(False)
    a("s_lshl_b32 s15, s13, 24")
    a(f"s_add_u32 s15, s15, {OFF_QF}")
    a("s_lshl_b32 s16, s12, 19")
    a("s_add_u32 s15, s15, s16")
    a("s_lshl_b32 s16, s14, 13")
    a("s_add_u32 s15, s15, s16")
    a("s_add_u32 s20, s4, s15"); a("s_addc_u32 s21, s5, 0")
    for tt in range(4):
        sgo = (tt >> 1) * 262144 + (tt & 1) * 1024
        a(f"v_add_u32 v4, {sgo}, v3")
        a(f"v_add_u32 v5, {sgo+4096}, v3")
        for w in range(4):
            t0 = ACC + (tt*8+2*w)*4; t1 = t0 + 4
            d = 144 + w*4
            a(f"v_cvt_pk_bf16_f32 v{d}, v{t0}, v{t0+1}")
            a(f"v_cvt_pk_bf16_f32 v{d+1}, v{t0+2}, v{t0+3}")
            a(f"v_cvt_pk_bf16_f32 v{d+2}, v{t1}, v{t1+1}")
            a(f"v_cvt_pk_bf16_f32 v{d+3}, v{t1+2}, v{t1+3}")
            a(f"global_store_dwordx4 v{4 if w<2 else 5}, {vr(d,4)}, s[20:21] offset:{(w&1)*2048}{sc}")
        a("s_nop 1")
    a(f"s_branch {endl}")
    a.label(f"{pre}_V")
    body(True)
    a("s_lshl_b32 s16, s12, 19")
    a(f"s_add_u32 s15, s16, {OFF_VF}")
    a("s_lshl_b32 s16, s14, 13")
    a("s_add_u32 s15, s15, s16")
    a("s_add_u32 s20, s4, s15"); a("s_addc_u32 s21, s5, 0")
    for sg in range(2):
        a(f"v_add_u32 v4, {sg*262144}, v3")
        a(f"v_add_u32 v5, {sg*262144+4096}, v3")
        for et in range(8):
            t0 = ACC + ((2*sg)*8+et)*4; t1 = ACC + ((2*sg+1)*8+et)*4
            d = 144 + (et&3)*4
            a(f"v_cvt_pk_bf16_f32 v{d}, v{t0}, v{t0+1}")
            a(f"v_cvt_pk_bf16_f32 v{d+1}, v{t0+2}, v{t0+3}")
            a(f"v_cvt_pk_bf16_f32 v{d+2}, v{t1}, v{t1+1}")
            a(f"v_cvt_pk_bf16_f32 v{d+3}, v{t1+2}, v{t1+3}")
            a(f"global_store_dwordx4 v{4 if et<4 else 5}, {vr(d,4)}, s[20:21] offset:{(et&3)*1024}{sc}")
            if et == 3: a("s_nop 1")
        a("s_nop 1")
```

```python
from common import *
import os
from k_qkv import qkv_body
from k_attn import attn_body
from k_moe import topk_body, moe1_body, moe2_body
SC = " sc1"
NWK = 224

def flag_store(a, sreg, vtmp=240):
    a("s_waitcnt vmcnt(0)")
    a("s_mov_b64 s[38:39], exec")
    a(f"v_mov_b32 v{vtmp}, s{sreg}")
    a(f"v_mov_b32 v{vtmp+1}, 1")
    a("s_mov_b64 exec, 1")
    a(f"global_store_dword v{vtmp}, v{vtmp+1}, s[4:5] sc1")
    a("s_mov_b64 exec, s[38:39]")

def gen_worker(a):
    a.label("WK_START")
    TL = int(os.environ.get("TL", "0"))
    def tl(i):
        if TL:
            a(f"s_memrealtime s[{80+2*i}:{81+2*i}]"); a("s_waitcnt lgkmcnt(0)")
    tl(0)
    load_ptr(a, 4, "ws")
    a("v_lshrrev_b32 v1, 6, v0")
    a("v_and_b32 v2, 63, v0")
    a("s_nop 0")
    a("v_readfirstlane_b32 s3, v1")
    a("s_lshr_b32 s40, s2, 3")
    a("s_mul_i32 s40, s40, 7")
    a("s_and_b32 s41, s2, 7")
    a("s_add_u32 s40, s40, s41")
    a("s_sub_u32 s40, s40, 1")
    a("s_waitcnt lgkmcnt(0)")
    a(f"s_cmp_lg_u32 s40, {NWK-1}")
    a("s_cbranch_scc1 WK_NOTOPK")
    def fl_topk(a):
        a(f"s_mov_b32 s41, {F_MISC}")
        flag_store(a, 41)
    topk_body(a, "WKT", 0, SC, fl_topk)
    a("s_barrier")
    a.label("WK_NOTOPK")
    a("s_lshr_b32 s42, s2, 3")
    a("s_and_b32 s43, s2, 7")
    a("s_sub_u32 s43, s43, 1")
    a.label("WK_GEMM")
    a("s_cmp_ge_u32 s42, 120")
    a("s_cbranch_scc1 WK_GEMM_DONE")
    a("s_cmp_ge_u32 s42, 80")
    a("s_cbranch_scc1 WK_GEMM_Q")
    a("s_mul_i32 s10, s42, 205")
    a("s_lshr_b32 s10, s10, 11")
    a("s_mul_i32 s11, s10, 10")
    a("s_sub_u32 s11, s42, s11")
    a("s_mul_i32 s11, s11, 7")
    a("s_add_u32 s11, s11, s43")
    a("s_cmp_ge_u32 s11, 64")
    a("s_cbranch_scc1 WK_GEMM_NEXT")
    a("s_add_u32 s11, s11, 32")
    a("s_branch WK_GEMM_GO")
    a.label("WK_GEMM_Q")
    a("s_sub_u32 s11, s42, 80")
    a("s_mul_i32 s10, s11, 205")
    a("s_lshr_b32 s10, s10, 10")
    a("s_mul_i32 s15, s10, 5")
    a("s_sub_u32 s11, s11, s15")
    a("s_mul_i32 s11, s11, 7")
    a("s_sub_u32 s15, 6, s43")
    a("s_add_u32 s11, s11, s15")
    a("s_cmp_ge_u32 s11, 32")
    a("s_cbranch_scc1 WK_GEMM_NEXT")
    a.label("WK_GEMM_GO")
    qkv_body(a, "WKG", SC, "WK_GEMM_FL")
    a.label("WK_GEMM_FL")
    a("s_lshl_b32 s41, s14, 9")
    a("s_lshl_b32 s15, s12, 4")
    a("s_add_u32 s41, s41, s15")
    a("s_lshl_b32 s15, s13, 2")
    a("s_add_u32 s41, s41, s15")
    a(f"s_add_u32 s41, s41, {F_QKV}")
    flag_store(a, 41)
    a.label("WK_GEMM_NEXT")
    a("s_add_u32 s42, s42, 32")
    a("s_branch WK_GEMM")
    a.label("WK_GEMM_DONE")
    tl(1)
    a("s_cmp_ge_u32 s40, 112")
    a("s_cbranch_scc1 WK_NOM1")
    a(f"v_mov_b32 v3, {F_MISC}")
    a.label("WK_M1POLL")
    a("global_load_dword v4, v3, s[4:5] sc1")
    a("s_waitcnt vmcnt(0)")
    a("v_cmp_eq_u32 vcc, 0, v4")
    a("s_cbranch_vccnz WK_M1POLL")
    a("s_mov_b32 s10, s40")
    def fl_m1(a):
        a("s_lshl_b32 s41, s10, 2")
        a(f"s_add_u32 s41, s41, {F_MISC+512}")
        flag_store(a, 41)
    moe1_body(a, "WK", 0, SC, fl_m1)
    a("s_barrier")
    a.label("WK_NOM1")
    a("s_cmp_lt_u32 s40, 112")
    a("s_cbranch_scc1 WK_NOM2")
    a("s_cmp_ge_u32 s40, 144")
    a("s_cbranch_scc1 WK_NOM2")
    a("v_lshlrev_b32 v3, 3, v2")
    a(f"v_add_u32 v3, {F_MISC+512}, v3")
    a.label("WK_M2POLL")
    a("global_load_dwordx2 v[4:5], v3, s[4:5] sc1")
    a("s_waitcnt vmcnt(0)")
    a("v_min_u32 v4, v4, v5")
    a("v_cmp_eq_u32 vcc, 0, v4")
    a("s_and_b32 s41, vcc_hi, 0x00ffffff")
    a("s_or_b32 s41, s41, vcc_lo")
    a("s_cbranch_scc1 WK_M2POLL")
    a("s_sub_u32 s10, s40, 112")
    def fl_m2(a):
        a("s_lshl_b32 s41, s10, 2")
        a(f"s_add_u32 s41, s41, {F_MISC+1024}")
        flag_store(a, 41)
    moe2_body(a, "WK", 0, SC, fl_m2)
    a("s_barrier")
    a.label("WK_NOM2")
    tl(2)
    load_ptr(a, 6, "x"); load_ptr(a, 8, "out")
    a("s_mov_b64 s[44:45], s[6:7]") if False else None
    a("s_lshr_b32 s42, s40, 4")
    a("s_and_b32 s43, s40, 15")
    a("v_lshlrev_b32 v3, 4, v2")
    a("s_lshl_b32 s12, s3, 20")
    a("s_lshl_b32 s13, s43, 11")
    a("s_add_u32 s12, s12, s13")
    a(f"s_add_u32 s12, s12, {OFF_WOF}")
    a("s_waitcnt lgkmcnt(0)")
    a("s_mov_b64 s[44:45], s[6:7]")
    a("s_mov_b64 s[46:47], s[8:9]")
    a("s_add_u32 s20, s4, s12"); a("s_addc_u32 s21, s5, 0")
    for j in range(32):
        for nt in range(2):
            a(f"global_load_dwordx4 {ar((j*2+nt)*4,4)}, v3, s[20:21] offset:{nt*1024}")
        a("s_add_u32 s20, s20, 32768"); a("s_addc_u32 s21, s21, 0")
    a.label("WK_SEG")
    a("s_cmp_ge_u32 s42, 64")
    a("s_cbranch_scc1 WK_END")
    a("s_lshl_b32 s14, s43, 1")
    a("s_lshr_b32 s15, s3, 1")
    a("s_add_u32 s14, s14, s15")
    a("s_mov_b32 s13, s42")
    a("s_lshl_b32 s12, s13, 5")
    a("s_add_u32 s12, s12, s14")
    a("s_lshl_b32 s15, s14, 9")
    a("s_lshr_b32 s16, s13, 1")
    a("s_lshl_b32 s16, s16, 4")
    a("s_add_u32 s15, s15, s16")
    a(f"s_add_u32 s15, s15, {F_QKV}")
    a("s_lshl_b32 s16, s12, 4")
    a(f"s_add_u32 s16, s16, {F_M}")
    a("v_mov_b32 v4, s15")
    a("v_mov_b32 v5, s16")
    a.label("WK_APOLL")
    a("global_load_dwordx4 v[8:11], v4, s[4:5] sc1")
    a("global_load_dwordx4 v[12:15], v5, s[4:5] sc1")
    a("s_waitcnt vmcnt(0)")
    a("v_min3_u32 v8, v8, v9, v10")
    a("v_min3_u32 v12, v12, v13, v14")
    a("v_min3_u32 v8, v8, v12, v15")
    a("v_cmp_eq_u32 vcc, 0, v8")
    a("s_cbranch_vccz WK_AGO")
    a("s_sleep 8")
    a("s_branch WK_APOLL")
    a.label("WK_AGO")
    a("s_and_b32 s15, s3, 1")
    a("s_cmp_eq_u32 s15, 1")
    a("s_cbranch_scc1 WK_AT1")
    attn_body(a, "WKA0", SC, (0,), SC)
    a("s_branch WK_ATD")
    a.label("WK_AT1")
    attn_body(a, "WKA1", SC, (1,), SC)
    a.label("WK_ATD")
    a("s_lshl_b32 s41, s12, 3")
    a("s_and_b32 s15, s3, 1")
    a("s_lshl_b32 s15, s15, 2")
    a("s_add_u32 s41, s41, s15")
    a(f"s_add_u32 s41, s41, {F_A}")
    flag_store(a, 41)
    a("s_lshl_b32 s15, s42, 8")
    a(f"s_add_u32 s15, s15, {F_A}")
    a("v_lshlrev_b32 v4, 2, v2")
    a("v_and_b32 v5, 31, v2")
    a("v_lshlrev_b32 v5, 2, v5")
    a(f"v_add_u32 v5, {F_MISC+1024}, v5")
    a("v_add_u32 v4, s15, v4")
    a.label("WK_OPOLL")
    a("global_load_dword v8, v4, s[4:5] sc1")
    a("global_load_dword v9, v5, s[4:5] sc1")
    a("s_waitcnt vmcnt(0)")
    a("v_min_u32 v8, v8, v9")
    a("v_cmp_eq_u32 vcc, 0, v8")
    a("s_cbranch_vccz WK_OGO")
    a("s_sleep 8")
    a("s_branch WK_OPOLL")
    a.label("WK_OGO")
    a("s_lshl_b32 s12, s42, 18")
    a("s_lshl_b32 s13, s3, 15")
    a("s_add_u32 s12, s12, s13")
    a(f"s_add_u32 s12, s12, {OFF_OF}")
    a("s_add_u32 s20, s4, s12"); a("s_addc_u32 s21, s5, 0")
    a("v_add_u32 v4, 131072, v3")
    a("v_and_b32 v5, 15, v2")
    a("v_lshlrev_b32 v5, 10, v5")
    a("v_lshrrev_b32 v6, 4, v2")
    a("v_lshlrev_b32 v6, 3, v6")
    a("v_add_u32 v5, v5, v6")
    a("s_lshl_b32 s12, s42, 15")
    a("s_lshr_b32 s13, s3, 1")
    a("s_lshl_b32 s13, s13, 14")
    a("s_add_u32 s12, s12, s13")
    a("s_lshl_b32 s13, s43, 6")
    a("s_add_u32 s12, s12, s13")
    a("s_and_b32 s13, s3, 1")
    a("s_lshl_b32 s13, s13, 5")
    a("s_add_u32 s12, s12, s13")
    a("v_add_u32 v5, s12, v5")
    a("global_load_dwordx2 v[24:25], v5, s[44:45]")
    a("global_load_dwordx2 v[26:27], v5, s[4:5] sc1")
    ACC = 8
    NB = 24; BUF = 32
    def loads(j):
        b = BUF + (j % NB)*8
        a(f"global_load_dwordx4 {vr(b,4)}, v3, s[20:21] offset:{(j&3)*1024} sc1")
        a(f"global_load_dwordx4 {vr(b+4,4)}, v4, s[20:21] offset:{(j&3)*1024} sc1")
        if (j & 3) == 3:
            a("s_add_u32 s20, s20, 4096"); a("s_addc_u32 s21, s21, 0")
    for j in range(NB): loads(j)
    issued = NB
    for j in range(32):
        a(f"s_waitcnt vmcnt({2*(issued-1-j)})")
        b = BUF + (j % NB)*8
        for tt in range(2):
            for nt in range(2):
                acc = vr(ACC+(tt*2+nt)*4, 4)
                c = "0" if j == 0 else acc
                a(f"v_mfma_f32_16x16x32_bf16 {acc}, {ar((j*2+nt)*4,4)}, {vr(b+4*tt,4)}, {c}")
        if issued < 32:
            loads(issued); issued += 1
    a("s_nop 7")
    a("s_lshl_b32 s12, s3, 12")
    a("v_add_u32 v6, s12, v3")
    for i in range(4):
        a(f"ds_write_b128 v6, {vr(ACC+4*i,4)} offset:{i*1024}")
    a("s_waitcnt lgkmcnt(0)")
    a("s_barrier")
    a("s_lshl_b32 s12, s3, 10")
    a("v_add_u32 v6, s12, v3")
    for w in range(4):
        a(f"ds_read_b128 {vr(32+4*w,4)}, v6 offset:{w*4096}")
    a("s_waitcnt lgkmcnt(0)")
    a("s_barrier")
    for r in range(4):
        a(f"v_add_f32 v{32+r}, v{32+r}, v{36+r}")
        a(f"v_add_f32 v{40+r}, v{40+r}, v{44+r}")
        a(f"v_add_f32 v{32+r}, v{32+r}, v{40+r}")
    a("v_cvt_pk_bf16_f32 v16, v32, v33")
    a("v_cvt_pk_bf16_f32 v17, v34, v35")
    def unpack(dst, s0, s1):
        a(f"v_lshlrev_b32 v{dst}, 16, v{s0}")
        a(f"v_and_b32 v{dst+1}, 0xffff0000, v{s0}")
        a(f"v_lshlrev_b32 v{dst+2}, 16, v{s1}")
        a(f"v_and_b32 v{dst+3}, 0xffff0000, v{s1}")
    unpack(20, 16, 17)
    unpack(36, 24, 25)
    for r in range(4): a(f"v_add_f32 v{20+r}, v{20+r}, v{36+r}")
    a("v_cvt_pk_bf16_f32 v16, v20, v21")
    a("v_cvt_pk_bf16_f32 v17, v22, v23")
    unpack(20, 16, 17)
    unpack(36, 26, 27)
    for r in range(4): a(f"v_add_f32 v{20+r}, v{20+r}, v{36+r}")
    a("v_cvt_pk_bf16_f32 v16, v20, v21")
    a("v_cvt_pk_bf16_f32 v17, v22, v23")
    a("global_store_dwordx2 v5, v[16:17], s[46:47]")
    a("s_add_u32 s42, s42, 14")
    a("s_branch WK_SEG")
    a.label("WK_END")
    if TL:
        tl(3)
        a("s_lshl_b32 s25, s40, 2"); a("s_add_u32 s25, s25, s3"); a("s_lshl_b32 s25, s25, 5")
        a(f"s_add_u32 s25, s25, {4*MB+131072+8192}")
        a("v_mov_b32 v16, s25")
        for i in range(4):
            a(f"v_mov_b32 v17, s{80+2*i}")
            a(f"global_store_dword v16, v17, s[4:5] offset:{4*i}")
```

```python
class LdsSB:
    def __init__(self, a):
        self.a = a; self.q = []
    def issue(self, text, tag=None):
        self.a(text); self.q.append(tag)
    def wait(self, *tags):
        last = -1
        for i, t in enumerate(self.q):
            if t in tags: last = i
        if last < 0: return
        n = len(self.q) - 1 - last
        self.a(f"s_waitcnt lgkmcnt({min(n,15)})")
        self.q = self.q[last+1:] if n <= 15 else self.q[len(self.q)-15:]
    def waitall(self):
        self.a("s_waitcnt lgkmcnt(0)"); self.q = []
```

```python
import sys
from common import *
from k_prep import gen_prep
from k_chain import gen_chain, CHAIN_LDS
a = Asm()
gen_prep(a)
gen_chain(a, fused=True)
launches = [("prep_kernel", 865, 256, 0), ("main_kernel", 256, 256, CHAIN_LDS)]
out = sys.argv[1] if len(sys.argv) > 1 else f"cdna_kernels/{NAME}.s"
open(out, "w").write(a.text(launches))
print("wrote", out, len(a.lines), "lines")
```

```python
NAME = "parallel_sum__memory_aug_recurrent_mem_tr__moe_arch_mod__prompt"
MB = 1 << 20
KA = dict(x=0, mem0=8, Wq=16, Wk=24, Wv=32, Wo=40, seg=48, Bx=56, wr=64, wg=72, wu=80, wd=88, out=96, dbg=104, ws=112)
OFF_XN  = 0
OFF_XNF = 2*MB
OFF_R   = 4*MB
OFF_MOE = 4*MB + 65536
OFF_FLG = 4*MB + 262144
F_QKV = OFF_FLG
F_M   = OFF_FLG + 16384
F_A   = OFF_FLG + 49152
F_MISC= OFF_FLG + 65536
F_LN  = OFF_FLG + 69632
F_INIT = OFF_FLG + 73728
FLG_BYTES = 65536 + 12288
NONCE = 56
CNONCE = 46
OFF_MEM = 5*MB
OFF_P   = 6*MB
NRING = 4
OFF_WQF = 8*MB
OFF_WKF = 12*MB
OFF_WVF = 16*MB
OFF_WOF = 20*MB
OFF_QF  = 32*MB
OFF_KF  = 48*MB
OFF_VF  = 64*MB
OFF_KMF = 80*MB
OFF_VMF = 88*MB
OFF_OF  = 96*MB

class Asm:
    def __init__(self):
        self.lines = []
        self.kernels = []
        self.uid = 0
    def __call__(self, s):
        for l in s.strip("\n").split("\n"):
            self.lines.append("    " + l.strip())
    def label(self, l):
        self.lines.append(l + ":")
    def newlabel(self, p="L"):
        self.uid += 1
        return f"{p}_{self.uid}"
    def begin(self, name):
        self.lines += [f".globl {name}", ".p2align 8", f".type {name},@function", f"{name}:"]
    def end(self, name, vgpr, accum, sgpr=102):
        self("s_endpgm")
        self.kernels.append((name, vgpr, accum, sgpr))
    def text(self, launches):
        hdr = []
        for (k, g, b, lds) in launches:
            hdr.append(f"; @launch kernel={k} grid=({g},1,1) block=({b},1,1) lds={lds}")
        out = hdr + ['.amdgcn_target "amdgcn-amd-amdhsa--gfx950"', ".text"] + self.lines
        out.append('.section .rodata,"a"')
        for (name, vgpr, accum, sgpr) in self.kernels:
            out += [".p2align 6", f".amdhsa_kernel {name}",
                    f"  .amdhsa_next_free_vgpr {vgpr}", f"  .amdhsa_next_free_sgpr {sgpr}",
                    f"  .amdhsa_accum_offset {accum}", "  .amdhsa_group_segment_fixed_size 0",
                    "  .amdhsa_kernarg_size 120", "  .amdhsa_user_sgpr_count 2",
                    "  .amdhsa_user_sgpr_kernarg_segment_ptr 1", "  .amdhsa_system_sgpr_workgroup_id_x 1",
                    ".end_amdhsa_kernel"]
        return "\n".join(out) + "\n"

def vr(b, n=1):
    return f"v{b}" if n == 1 else f"v[{b}:{b+n-1}]"
def ar(b, n=1):
    return f"a{b}" if n == 1 else f"a[{b}:{b+n-1}]"
def sr(b, n=1):
    return f"s{b}" if n == 1 else f"s[{b}:{b+n-1}]"

def load_ptr(a, sreg, which):
    a(f"s_load_dwordx2 {sr(sreg,2)}, s[0:1], {KA[which]}")

def add64_imm(a, sd, ss, imm):
    a(f"s_add_u32 s{sd}, s{ss}, {imm}")
    a(f"s_addc_u32 s{sd+1}, s{ss+1}, 0")

def wave_reduce(a, v, t, op="add", skip_low=0):
    ins = {"add": "v_add_f32", "max": "v_max_f32", "maxu": "v_max_u32"}[op]
    for ctl in ["quad_perm:[1,0,3,2]", "quad_perm:[2,3,0,1]", "row_half_mirror", "row_mirror"]:
        a("s_nop 1")
        a(f"{ins}_dpp v{v}, v{v}, v{v} {ctl} row_mask:0xf bank_mask:0xf")
    xor_reduce_16_32(a, v, t, op)

def xor_reduce_16_32(a, v, t, op="add"):
    ins = {"add": "v_add_f32", "max": "v_max_f32", "maxu": "v_max_u32"}[op]
    for sw in ["v_permlane16_swap_b32", "v_permlane32_swap_b32"]:
        a(f"v_mov_b32 v{t}, v{v}")
        a("s_nop 1")
        a(f"{sw} v{v}, v{t}")
        a("s_nop 1")
        a(f"{ins} v{v}, v{v}, v{t}")

def round_bf16(a, v, n=1):
    a(f"v_cvt_pk_bf16_f32 v{v}, v{v}, v{v}")
    a(f"v_lshlrev_b32 v{v}, 16, v{v}")

class VmSB:
    def __init__(self, a):
        self.a = a; self.q = []
    def issue(self, text, tag=None):
        self.a(text); self.q.append(tag)
    def n(self): return len(self.q)
    def wait(self, *tags):
        last = -1
        for i, t in enumerate(self.q):
            if t in tags: last = i
        if last < 0: return
        n = len(self.q) - 1 - last
        assert n <= 63, n
        self.a(f"s_waitcnt vmcnt({n})")
        self.q = self.q[last+1:]

def gen_selB(a, base, lane="v2", t0=None):
    a(f"v_and_b32 v{t0}, 1, {lane}")
    a(f"v_lshlrev_b32 v{t0}, 4, v{t0}")
    a(f"v_mov_b32 v{t0+1}, 0x3f80")
    a(f"v_lshlrev_b32 v{t0}, v{t0}, v{t0+1}")
    a(f"v_lshrrev_b32 v{t0+1}, 4, {lane}")
    a(f"v_bfe_u32 v{t0+2}, {lane}, 3, 1")
    a(f"v_sub_u32 v{t0+1}, v{t0+1}, v{t0+2}")
    a(f"v_lshlrev_b32 v{t0+1}, 2, v{t0+1}")
    a(f"v_bfe_u32 v{t0+2}, {lane}, 1, 2")
    a(f"v_add_u32 v{t0+1}, v{t0+1}, v{t0+2}")
    for t in range(2):
        for rho in range(4):
            a(f"v_cmp_eq_u32 vcc, {8*t+rho}, v{t0+1}")
            a("s_nop 1")
            a(f"v_cndmask_b32 v{base+4*t+rho}, 0, v{t0}, vcc")

def tr_unit(a, A0, A1, D, SEL):
    a(f"v_mfma_f32_16x16x32_bf16 {vr(D,4)}, {A0}, {vr(SEL,4)}, 0")
    a(f"v_mfma_f32_16x16x32_bf16 {vr(D+4,4)}, {A0}, {vr(SEL+4,4)}, 0")
    a(f"v_mfma_f32_16x16x32_bf16 {vr(D+8,4)}, {A1}, {vr(SEL,4)}, 0")
    a(f"v_mfma_f32_16x16x32_bf16 {vr(D+12,4)}, {A1}, {vr(SEL+4,4)}, 0")

def tr_pack(a, D, o0, o1):
    for t, o in ((0, o0), (1, o1)):
        a(f"v_cvt_pk_bf16_f32 v{o}, v{D+4*t}, v{D+4*t+1}")
        a(f"v_cvt_pk_bf16_f32 v{o+1}, v{D+4*t+2}, v{D+4*t+3}")
        a(f"v_cvt_pk_bf16_f32 v{o+2}, v{D+8+4*t}, v{D+8+4*t+1}")
        a(f"v_cvt_pk_bf16_f32 v{o+3}, v{D+8+4*t+2}, v{D+8+4*t+3}")
```

```python
from common import *
from sched import LdsSB
import os
LDS_WO = 0
LDS_MEMS = 131072
LDS_SC = LDS_MEMS + 8192
LDS_PB = LDS_SC + 9216
LDS_OX = LDS_PB + 2048
CHAIN_LDS = LDS_OX + 4096

SCALE = 0x3db504f3
LOG2E = 0x3fb8aa3b
KX, VX = 96, 104
PROF = int(os.environ.get("PROF", "0"))
DBGMEM = int(os.environ.get("DBGMEM", "0"))
TL = int(os.environ.get("TL", "0"))
def tl(a, i):
    if TL:
        a(f"s_memrealtime s[{80+2*i}:{81+2*i}]")
        a("s_waitcnt lgkmcnt(0)")

OFF_MEMH = OFF_MEM + 65536
E_NONCE = int(os.environ.get("E_NONCE", "24")); E_CHK = int(os.environ.get("E_CHK", "56")); E_EVAL = int(os.environ.get("E_EVAL", "61"))

def stamp(a, i):
    if not PROF: return
    a("s_memrealtime s[40:41]" if PROF == 2 else "s_memtime s[40:41]")
    a("s_waitcnt lgkmcnt(0)")
    a("s_sub_u32 s43, s40, s42")
    a(f"s_add_u32 s{50+i}, s{50+i}, s43")
    a("s_mov_b32 s42, s40")
    if PROF == 2:
        a("s_cmp_eq_u32 s7, 30")
        a(f"s_cselect_b32 s{60+i}, s40, s{60+i}")

FUSED = False
def kvflag_poll(a, lab, t=112):
    a(f"v_and_b32 v{t}, 15, v2")
    a(f"v_lshlrev_b32 v{t}, 2, v{t}")
    a(f"v_add_u32 v{t}, s34, v{t}")
    a.label(lab)
    a(f"global_load_dword v{t+1}, v{t}, s[4:5] sc1")
    a("s_waitcnt vmcnt(0)")
    a(f"v_cmp_ne_u32 vcc, s{CNONCE}, v{t+1}")
    a("s_and_b32 s25, vcc_lo, 0x6666")
    a(f"s_cbranch_scc1 {lab}")
    a("s_add_u32 s34, s34, 64")
def mflag_store(a, t=112):
    a(f"v_mov_b32 v{t}, s35")
    a(f"v_mov_b32 v{t+1}, s{CNONCE}")
    a("s_mov_b64 exec, 1")
    a(f"global_store_dword v{t}, v{t+1}, s[4:5] sc1")
    a("s_mov_b64 exec, -1")
    a("s_add_u32 s35, s35, 512")

def gen_chain(a, fused=False):
    global FUSED
    FUSED = fused
    name = "main_kernel" if fused else "chain_kernel"
    a.begin(name)
    a("s_cmp_ge_u32 s2, 256")
    a("s_cbranch_scc1 CH_END")
    a("s_and_b32 s3, s2, 7")
    a("s_cmp_lg_u32 s3, 0")
    a("s_cbranch_scc1 " + ("WK_START" if fused else "CH_END"))
    a("s_lshr_b32 s6, s2, 3")
    tl(a, 0)
    load_ptr(a, 4, "ws")
    load_ptr(a, 8, "mem0")
    load_ptr(a, 28, "dbg")
    a("v_lshrrev_b32 v1, 6, v0")
    a("v_and_b32 v2, 63, v0")
    a("s_nop 0")
    a("v_readfirstlane_b32 s3, v1")
    a("v_lshlrev_b32 v3, 4, v2")
    a("s_getreg_b32 s24, hwreg(HW_REG_XCC_ID)")
    a("s_and_b32 s24, s24, 15")
    a("s_add_u32 s24, s24, 1")
    a("s_memrealtime s[30:31]")
    a("s_waitcnt lgkmcnt(0)")
    V = VmSB(a)
    a(f"s_or_b32 s{CNONCE}, s30, 1")
    a("s_lshl_b32 s25, s6, 2"); a("s_add_u32 s25, s25, s3")
    a("s_lshl_b32 s26, s25, 2"); a(f"s_add_u32 s26, s26, {4*MB+196608}")
    a("s_add_u32 s30, s4, s26"); a("s_addc_u32 s31, s5, 0")
    a("s_add_u32 s36, s28, 128"); a("s_addc_u32 s37, s29, 0")
    a("s_cmp_eq_u32 s25, 0")
    a("s_cselect_b32 s30, s36, s30"); a("s_cselect_b32 s31, s37, s31")
    a("v_mov_b32 v4, 0")
    a(f"v_mov_b32 v5, s{CNONCE}")
    a("s_mov_b64 exec, 1")
    V.issue("global_store_dword v4, v5, s[30:31] sc0 sc1", "st")
    a("s_mov_b64 exec, -1")
    a("s_mov_b32 s49, s25")
    a("v_mov_b32 v4, s49"); a("v_mov_b32 v5, s24")
    a("s_mov_b64 exec, 1")
    V.issue("global_store_byte v4, v5, s[28:29] sc0 sc1", "st")
    a("s_mov_b64 exec, -1")
    for i, nm in enumerate(("Wq", "Wk", "Wv", "Wo")):
        load_ptr(a, 12+2*i, nm)
    SEL = 8
    gen_selB(a, SEL, "v2", 16)
    a("v_bfe_u32 v16, v2, 2, 2")
    a("v_lshlrev_b32 v16, 3, v16")
    a("v_and_b32 v17, 3, v2")
    a("v_add_u32 v16, v16, v17")
    a("v_lshlrev_b32 v16, 13, v16")
    a("v_lshrrev_b32 v17, 4, v2")
    a("v_lshlrev_b32 v17, 4, v17")
    a("v_add_u32 v4, v16, v17")
    a("v_add_u32 v5, 32768, v4")
    a("v_and_b32 v16, 15, v2")
    a("v_lshlrev_b32 v16, 10, v16")
    a("v_add_u32 v6, v16, v17")
    a("v_add_u32 v7, 16384, v6")
    a("s_waitcnt lgkmcnt(0)")
    a("s_lshl_b32 s25, s6, 8"); a("s_lshl_b32 s26, s3, 6"); a("s_add_u32 s25, s25, s26")
    for i in range(3):
        a(f"s_add_u32 s{12+2*i}, s{12+2*i}, s25"); a(f"s_addc_u32 s{13+2*i}, s{13+2*i}, 0")
    a("s_lshl_b32 s25, s6, 17"); a("s_lshl_b32 s26, s3, 15"); a("s_add_u32 s25, s25, s26")
    a("s_add_u32 s18, s18, s25"); a("s_addc_u32 s19, s19, 0")
    a("v_add_u32 v1, s26, v3")
    DT = [96, 112]
    def fidx(kk, t): return (((kk>>1)*2+t)*2+(kk&1))*4
    def wreg(m, kk, t):
        i = fidx(kk, t)
        return ar(i,4) if m == 0 else (ar(128+i,4) if m == 1 else vr(128+i,4))
    items = []
    def ld_wo(cp):
        b = 16 + (cp & 7)*8
        V.issue(f"global_load_dwordx4 {vr(b,4)}, v6, s[18:19] offset:{cp*64}", ("o", cp))
        V.issue(f"global_load_dwordx4 {vr(b+4,4)}, v7, s[18:19] offset:{cp*64}", ("o", cp))
    def ld_w(m, kk):
        V.issue(f"global_load_dwordx4 {wreg(m,kk,0)}, v4, s[{12+2*m}:{13+2*m}]", (m, kk))
        V.issue(f"global_load_dwordx4 {wreg(m,kk,1)}, v5, s[{12+2*m}:{13+2*m}]", (m, kk))
        a(f"s_add_u32 s{12+2*m}, s{12+2*m}, 262144"); a(f"s_addc_u32 s{13+2*m}, s{13+2*m}, 0")
    wq = [(m, kk) for m in range(3) for kk in range(16)]
    wpos = [0]
    def fill(limit=60):
        while wpos[0] < len(wq) and V.n() + 2 <= limit:
            ld_w(*wq[wpos[0]]); wpos[0] += 1
    for cp in range(8): ld_wo(cp)
    fill()
    units = [("o", cp) for cp in range(16)] + wq
    pend = None
    def finish(u, D):
        if u[0] == "o":
            cp = u[1]
            tr_pack(a, D, 80, 84)
            a(f"ds_write_b128 v1, v[80:83] offset:{(2*cp)*1024}")
            a(f"ds_write_b128 v1, v[84:87] offset:{(2*cp+1)*1024}")
        else:
            m, kk = u
            if m == 2:
                tr_pack(a, D, 128+fidx(kk,0), 128+fidx(kk,1))
            else:
                tr_pack(a, D, 88, 92)
                a("s_nop 0")
                for t in range(2):
                    for r in range(4):
                        a(f"v_accvgpr_write_b32 a{128*m+fidx(kk,t)+r}, v{88+4*t+r}")
    a("s_lshl_b32 s25, s6, 13"); a("s_lshl_b32 s26, s3, 11"); a("s_add_u32 s25, s25, s26")
    a(f"s_add_u32 s26, s25, {OFF_KF}")
    a("s_add_u32 s72, s4, s26"); a("s_addc_u32 s73, s5, 0")
    a(f"s_add_u32 s26, s25, {OFF_VF}")
    a("s_add_u32 s74, s4, s26"); a("s_addc_u32 s75, s5, 0")
    a("s_lshl_b32 s34, s6, 9")
    a(f"s_add_u32 s34, s34, {F_QKV}")
    U_NONCE, U_CHK, U_EVAL = E_NONCE, E_CHK, E_EVAL
    def dts(i): return DT[i & 1] if i < 18 else DT[i & 1] - 64
    for i, u in enumerate(units):
        V.wait(u)
        D = dts(i)
        if u[0] == "o":
            b = 16 + (u[1] & 7)*8
            tr_unit(a, vr(b,4), vr(b+4,4), D, SEL)
        else:
            tr_unit(a, wreg(u[0],u[1],0), wreg(u[0],u[1],1), D, SEL)
        if pend is not None: finish(pend, dts(i-1))
        if u[0] == "o" and u[1] < 8: ld_wo(u[1] + 8)
        if i == U_NONCE:
            a("v_mov_b32 v64, 128")
            V.issue("global_load_dword v65, v64, s[28:29] sc0 sc1", "nonce")
        if i == U_CHK:
            V.wait("nonce")
            a(f"v_readfirstlane_b32 s{CNONCE}, v65")
            a("v_and_b32 v64, 31, v2"); a("v_lshlrev_b32 v64, 2, v64")
            V.issue("global_load_dword v66, v64, s[28:29] sc0 sc1", "chk")
            a("v_and_b32 v67, 15, v2"); a("v_lshlrev_b32 v67, 2, v67"); a("v_add_u32 v67, s34, v67")
            V.issue("global_load_dword v68, v67, s[4:5] sc1", "chk")
            a("v_min_u32 v67, 47, v2"); a("v_lshlrev_b32 v67, 3, v67"); a(f"v_add_u32 v67, {F_INIT}, v67")
            V.issue("global_load_dwordx2 v[70:71], v67, s[4:5] sc1", "chk")
        if i == U_EVAL:
            V.wait("chk")
            a("s_mul_i32 s25, s24, 0x01010101")
            a("v_cmp_ne_u32 vcc, s25, v66")
            a("s_or_b32 s47, vcc_lo, vcc_hi")
            a(f"v_cmp_ne_u32 vcc, s{CNONCE}, v68")
            a("s_and_b32 s25, vcc_lo, 0x6666")
            a("s_or_b32 s47, s47, s25")
            a(f"v_xor_b32 v70, s{CNONCE}, v70"); a(f"v_xor_b32 v71, s{CNONCE}, v71"); a("v_or_b32 v70, v70, v71")
            a("v_cmp_ne_u32 vcc, 0, v70")
            a("s_or_b32 s47, s47, vcc_lo"); a("s_or_b32 s47, s47, vcc_hi")
            a(f"s_cmp_eq_u32 s{CNONCE}, 0")
            a("s_cselect_b32 s47, 1, s47")
            for (b, p) in ((KX, 72), (VX, 74)):
                V.issue(f"global_load_dwordx4 {vr(b,4)}, v3, s[{p}:{p+1}] sc1", "kv")
                V.issue(f"global_load_dwordx4 {vr(b+4,4)}, v3, s[{p}:{p+1}] offset:1024 sc1", "kv")
        fill()
        pend = u
    a("s_nop 7")
    finish(pend, dts(len(units)-1))
    tl(a, 1)
    a("s_mov_b32 s20, 0x00ff00ff"); a("s_mov_b32 s21, 0x00ff00ff")
    a("s_mov_b32 s22, 0x0ffc0ffc"); a("s_mov_b32 s23, 0x0ffc0ffc")
    a("s_mov_b32 s32, 0x0ffc0ffc"); a("s_mov_b32 s33, 0")
    a("s_mov_b32 s44, 0xff00ff00"); a("s_mov_b32 s45, 0xff00ff00")
    a("s_lshl_b32 s25, s3, 11")
    a("v_add_u32 v4, s25, v3")
    a(f"s_add_u32 s25, s25, {LDS_MEMS}")
    a("v_add_u32 v5, s25, v3")
    a(f"v_add_u32 v6, {LDS_MEMS}, v3")
    a("v_lshrrev_b32 v7, 4, v2")
    a("v_mul_u32_u24 v7, 144, v7")
    a("v_and_b32 v8, 15, v2")
    a("v_lshlrev_b32 v8, 4, v8")
    a("v_add_u32 v7, v7, v8")
    a("s_mul_i32 s25, s3, 2304")
    a(f"s_add_u32 s25, s25, {LDS_SC}")
    a("v_add_u32 v7, s25, v7")
    a("v_bfe_u32 v16, v2, 2, 2")
    a("v_and_b32 v17, 3, v2")
    a("v_bfe_u32 v18, v2, 4, 1")
    a("s_lshl_b32 s25, s3, 1")
    a("v_add_u32 v18, s25, v18")
    a("v_cmp_eq_u32 vcc, 3, v16")
    a("s_nop 1")
    a("v_cndmask_b32 v19, v16, 0, vcc")
    a("v_mul_u32_u24 v19, 576, v19")
    a("v_mul_u32_u24 v20, 144, v17")
    a("v_add_u32 v19, v19, v20")
    a("v_lshlrev_b32 v20, 4, v18")
    a("v_add_u32 v19, v19, v20")
    a(f"v_add_u32 v8, {LDS_SC}, v19")
    a("v_add_u32 v19, -1, v16")
    a("v_lshlrev_b32 v19, 3, v19")
    a("v_and_b32 v19, 31, v19")
    a("v_lshlrev_b32 v20, 5, v17")
    a("v_add_u32 v19, v19, v20")
    a("v_and_b32 v20, 1, v17")
    a("v_lshlrev_b32 v20, 3, v20")
    a("v_add_u32 v20, 128, v20")
    a("v_cmp_eq_u32 vcc, 0, v16")
    a("s_nop 1")
    a("v_cndmask_b32 v19, v19, v20, vcc")
    a("v_mul_u32_u24 v20, 144, v18")
    a("v_add_u32 v19, v19, v20")
    a(f"v_add_u32 v0, {LDS_PB}, v19")
    a("v_and_b32 v19, 7, v2")
    a("v_mul_u32_u24 v19, 144, v19")
    a("v_lshrrev_b32 v20, 4, v2")
    a("v_lshlrev_b32 v20, 5, v20")
    a("v_add_u32 v19, v19, v20")
    a(f"v_add_u32 v15, {LDS_PB}, v19")
    a("v_and_b32 v19, 7, v2")
    a("v_mul_u32_u24 v19, 144, v19")
    a("v_lshrrev_b32 v20, 4, v2")
    a("v_lshlrev_b32 v20, 2, v20")
    a("v_add_u32 v19, v19, v20")
    a(f"v_add_u32 v77, {LDS_PB+128}, v19")
    a("v_lshrrev_b32 v19, 5, v2")
    a("v_lshlrev_b32 v19, 8, v19")
    a("v_and_b32 v20, 7, v2")
    a("v_lshlrev_b32 v20, 5, v20")
    a("v_add_u32 v19, v19, v20")
    a("v_bfe_u32 v20, v2, 4, 1")
    a("v_lshlrev_b32 v20, 3, v20")
    a("v_add_u32 v19, v19, v20")
    a("s_lshl_b32 s25, s3, 9")
    a(f"s_add_u32 s25, s25, {LDS_OX}")
    a("v_add_u32 v9, s25, v19")
    a("v_bfe_u32 v21, v2, 2, 2")
    a("v_lshlrev_b32 v21, 1, v21")
    a("v_and_b32 v20, 1, v2")
    a("v_add_u32 v21, v21, v20")
    a("v_bfe_u32 v22, v2, 1, 1")
    a("v_lshrrev_b32 v19, 5, v2")
    a("v_lshlrev_b32 v19, 9, v19")
    a("v_bfe_u32 v20, v2, 4, 1")
    a("v_lshlrev_b32 v20, 8, v20")
    a("v_add_u32 v19, v19, v20")
    a("v_lshlrev_b32 v20, 5, v21")
    a("v_add_u32 v19, v19, v20")
    a("v_lshlrev_b32 v20, 4, v22")
    a("v_add_u32 v19, v19, v20")
    a(f"v_add_u32 v10, {LDS_OX}, v19")
    a("v_mov_b32 v74, 0x44444444")
    a("v_mov_b32 v20, 0xeeeeeeee")
    a("v_cmp_eq_u32 vcc, 1, v22")
    a("s_nop 1")
    a("v_cndmask_b32 v74, v74, v20, vcc")
    a("v_bfe_u32 v19, v2, 1, 2")
    a("v_lshrrev_b32 v20, 4, v2")
    a("v_and_b32 v23, 1, v2")
    a("v_lshlrev_b32 v23, 4, v23")
    a("v_mov_b32 v24, 0x3f80")
    a("v_lshlrev_b32 v24, v23, v24")
    a("v_cmp_eq_u32 vcc, v19, v20")
    a("s_nop 1")
    a("v_cndmask_b32 v24, 0, v24, vcc")
    a("v_bfe_u32 v19, v2, 3, 1")
    a("v_cmp_eq_u32 vcc, 0, v19")
    a("s_nop 1")
    a("v_cndmask_b32 v72, 0, v24, vcc")
    a("v_cndmask_b32 v73, v24, 0, vcc")
    a("v_lshrrev_b32 v19, 4, v2")
    a("v_lshlrev_b32 v19, 8, v19")
    a("v_and_b32 v20, 7, v2")
    a("v_lshlrev_b32 v20, 4, v20")
    a("v_add_u32 v75, v19, v20")
    a("v_lshrrev_b32 v19, 5, v2")
    a("v_lshlrev_b32 v19, 7, v19")
    a("v_and_b32 v20, 15, v2")
    a("v_lshlrev_b32 v20, 3, v20")
    a("v_add_u32 v19, v19, v20")
    a("v_bfe_u32 v20, v2, 4, 1")
    a("v_lshlrev_b32 v20, 2, v20")
    a("v_add_u32 v76, v19, v20")
    a("s_lshl_b32 s25, s3, 13")
    a("v_add_u32 v11, s25, v3")
    a("v_add_u32 v1, 65536, v11")
    a("v_lshrrev_b32 v12, 3, v2")
    a("v_lshlrev_b32 v12, 14, v12")
    a("v_and_b32 v13, 7, v2")
    a("v_lshlrev_b32 v13, 4, v13")
    a("v_add_u32 v12, v12, v13")
    a("s_lshl_b32 s25, s6, 7")
    a("s_lshl_b32 s26, s3, 17")
    a("s_add_u32 s25, s25, s26")
    a("v_add_u32 v12, s25, v12")
    a("s_lshl_b32 s25, s6, 14")
    a("s_lshl_b32 s26, s3, 12")
    a("s_add_u32 s25, s25, s26")
    a("v_add_u32 v13, s25, v3")
    a("v_lshrrev_b32 v14, 5, v2")
    a("v_lshlrev_b32 v14, 8, v14")
    a("v_bfe_u32 v16, v2, 1, 1")
    a("v_lshlrev_b32 v16, 5, v16")
    a("v_add_u32 v14, v14, v16")
    a("v_bfe_u32 v16, v2, 4, 1")
    a("v_lshlrev_b32 v16, 4, v16")
    a("v_add_u32 v14, v14, v16")
    a("v_bfe_u32 v16, v2, 2, 1")
    a("v_lshlrev_b32 v16, 2, v16")
    a("v_add_u32 v14, v14, v16")
    a("s_lshr_b32 s25, s6, 3")
    a("s_lshl_b32 s25, s25, 11")
    a("s_lshl_b32 s26, s3, 9")
    a("s_add_u32 s25, s25, s26")
    a("s_bfe_u32 s26, s6, 0x20001")
    a("s_lshl_b32 s26, s26, 6")
    a("s_add_u32 s25, s25, s26")
    a("s_and_b32 s26, s6, 1")
    a("s_lshl_b32 s26, s26, 3")
    a("s_add_u32 s25, s25, s26")
    a("v_add_u32 v14, s25, v14")
    a("v_lshlrev_b32 v78, 10, v21")
    a("v_lshrrev_b32 v19, 4, v2")
    a("v_lshlrev_b32 v19, 5, v19")
    a("v_add_u32 v78, v78, v19")
    a("v_lshlrev_b32 v19, 2, v22")
    a("v_add_u32 v78, v78, v19")
    a("s_lshl_b32 s25, s3, 8")
    a("v_add_u32 v78, s25, v78")
    a("s_mov_b32 s38, 0x00550055"); a("s_mov_b32 s39, 0x00550055")
    a("s_lshl_b32 s25, s6, 13")
    a("s_lshl_b32 s26, s3, 11")
    a("s_add_u32 s25, s25, s26")
    a(f"s_add_u32 s26, s25, {OFF_KF}")
    a("s_add_u32 s12, s4, s26"); a("s_addc_u32 s13, s5, 0")
    a(f"s_add_u32 s26, s25, {OFF_VF}")
    a("s_add_u32 s14, s4, s26"); a("s_addc_u32 s15, s5, 0")
    a("s_lshl_b32 s25, s6, 12")
    a("s_lshl_b32 s26, s3, 10")
    a("s_add_u32 s25, s25, s26")
    a(f"s_add_u32 s26, s25, {OFF_KMF}")
    a("s_add_u32 s16, s4, s26"); a("s_addc_u32 s17, s5, 0")
    a(f"s_add_u32 s26, s25, {OFF_VMF}")
    a("s_add_u32 s18, s4, s26"); a("s_addc_u32 s19, s5, 0")
    add64_imm(a, 26, 4, OFF_MEM + 8192)
    q = " sc1" if fused else ""
    def pf_k():
        a(f"global_load_dwordx4 {vr(KX,4)}, v3, s[12:13]{q}")
        a(f"global_load_dwordx4 {vr(KX+4,4)}, v3, s[12:13] offset:1024{q}")
        a("s_add_u32 s12, s12, 262144"); a("s_addc_u32 s13, s13, 0")
    def pf_v():
        a(f"global_load_dwordx4 {vr(VX,4)}, v3, s[14:15]{q}")
        a(f"global_load_dwordx4 {vr(VX+4,4)}, v3, s[14:15] offset:1024{q}")
        a("s_add_u32 s14, s14, 262144"); a("s_addc_u32 s15, s15, 0")
    a("s_lshl_b32 s35, s6, 4")
    a("s_lshl_b32 s25, s3, 2")
    a("s_add_u32 s35, s35, s25")
    a(f"s_add_u32 s35, s35, {F_M}")
    a("s_mov_b32 s7, 0")
    if PROF:
        for i in range(10): a(f"s_mov_b32 s{50+i}, 0")
        a("s_mov_b32 s70, 0"); a("s_mov_b32 s71, 0")
        a("s_memtime s[40:41]"); a("s_waitcnt lgkmcnt(0)"); a("s_mov_b32 s42, s40")
    a("s_waitcnt vmcnt(0) lgkmcnt(0)")
    a("s_cmp_lg_u32 s47, 0")
    a("s_cbranch_scc1 CH_SLOWSTART")
    a("s_add_u32 s34, s34, 64")
    a("s_add_u32 s12, s12, 262144"); a("s_addc_u32 s13, s13, 0")
    a("s_add_u32 s14, s14, 262144"); a("s_addc_u32 s15, s15, 0")
    tl(a, 2)
    a("s_barrier")
    a("s_branch CH_FAST_LOOP")
    a.label("CH_SLOWSTART")
    a("v_mov_b32 v16, 128")
    a.label("CH_NONW")
    a("global_load_dword v17, v16, s[28:29] sc0 sc1")
    a("s_waitcnt vmcnt(0)")
    a(f"v_readfirstlane_b32 s{CNONCE}, v17")
    a(f"s_cmp_eq_u32 s{CNONCE}, 0")
    a("s_cbranch_scc1 CH_NONW")
    a("v_min_u32 v16, 47, v2"); a("v_lshlrev_b32 v16, 3, v16"); a(f"v_add_u32 v16, {F_INIT}, v16")
    a.label("CH_INITW")
    a("global_load_dwordx2 v[18:19], v16, s[4:5] sc1")
    a("s_waitcnt vmcnt(0)")
    a(f"v_xor_b32 v18, s{CNONCE}, v18"); a(f"v_xor_b32 v19, s{CNONCE}, v19"); a("v_or_b32 v18, v18, v19")
    a("v_cmp_ne_u32 vcc, 0, v18")
    a("s_cbranch_vccnz CH_INITW")
    kvflag_poll(a, "CH_KVF0")
    tl(a, 2)
    pf_k(); pf_v()
    a("v_add_u32 v18, 64, v2")
    a.label("CH_MODE")
    a("global_load_ubyte v17, v2, s[28:29] sc0 sc1")
    a("global_load_ubyte v19, v18, s[28:29] sc0 sc1")
    a("s_waitcnt vmcnt(0)")
    a("v_min_u32 v16, v17, v19")
    a("v_cmp_eq_u32 vcc, 0, v16")
    a("s_cbranch_vccnz CH_MODE")
    a("v_cmp_ne_u32 vcc, s24, v17")
    a("s_or_b32 s25, vcc_lo, vcc_hi")
    a("v_cmp_ne_u32 vcc, s24, v19")
    a("s_or_b32 s25, s25, vcc_lo")
    a("s_or_b32 s25, s25, vcc_hi")
    a("s_barrier")
    a("s_cmp_lg_u32 s25, 0")
    a("s_cbranch_scc1 CH_SLOW_LOOP")
    for fast in (True, False):
        gen_loop(a, fast, pf_k, pf_v)
    a.label("CH_FIN")
    if TL:
        tl(a, 3)
        a("s_lshl_b32 s25, s6, 2"); a("s_add_u32 s25, s25, s3"); a("s_lshl_b32 s25, s25, 5")
        a(f"s_add_u32 s25, s25, {4*MB+131072}")
        a("v_mov_b32 v16, s25")
        for i in range(4):
            a(f"v_mov_b32 v17, s{80+2*i}")
            a(f"global_store_dword v16, v17, s[4:5] offset:{4*i}")
    if fused:
        a("s_waitcnt vmcnt(0)")
        mflag_store(a)
    if PROF:
        a("s_lshl_b32 s25, s6, 2"); a("s_add_u32 s25, s25, s3"); a("s_lshl_b32 s25, s25, 6")
        a(f"s_add_u32 s25, s25, {4*MB+131072}")
        a("v_mov_b32 v16, s25")
        for i in range(10):
            a(f"v_mov_b32 v17, s{(60 if PROF==2 else 50)+i}")
            a(f"global_store_dword v16, v17, s[4:5] offset:{4*i}")
        for i in range(2):
            a(f"v_mov_b32 v17, s{70+i}")
            a(f"global_store_dword v16, v17, s[4:5] offset:{40+4*i}")
    if fused:
        a("s_endpgm")
        from k_work import gen_worker
        gen_worker(a)
    a.label("CH_END")
    a.end(name, 512, 256)

def gen_loop(a, fast, pf_k, pf_v):
    tag = "FAST" if fast else "SLOW"
    sc = "" if fast else " sc1"
    MF = 16
    AQ, AK, AV = 48, 56, 64
    T = 112
    IDX = "v74"
    L = LdsSB(a)
    a.label(f"CH_{tag}_LOOP")
    stamp(a, 0)
    a("s_cmp_eq_u32 s7, 0")
    a(f"s_cbranch_scc1 CH_{tag}_FIRST")
    for _ in range(int(os.environ.get("MDELAY", "0"))): a("s_nop 15")
    a.label(f"CH_{tag}_MPOLL")
    if PROF: a("s_add_u32 s71, s71, 1")
    a("global_load_dwordx4 v[112:115], v4, s[8:9] sc1")
    a("global_load_dwordx4 v[116:119], v4, s[8:9] offset:1024 sc1")
    for i in range(12): a(f"v_mov_b64 {vr(AQ+2*i,2)}, 0")
    a("s_waitcnt vmcnt(0)")
    a("v_max3_u32 v120, v112, v113, v114")
    a("v_max3_u32 v121, v115, v116, v117")
    a("v_max3_u32 v120, v120, v118, v119")
    a("v_max_u32 v120, v120, v121")
    a("v_cmp_eq_u32 vcc, -1, v120")
    a(f"s_cbranch_vccnz CH_{tag}_MPOLL")
    a(f"s_branch CH_{tag}_GOT")
    a.label(f"CH_{tag}_FIRST")
    for u in range(2):
        for G in range(4):
            a(f"global_load_dword v{112+4*u+G}, v78, s[8:9] offset:{u*128+G*8}")
    for i in range(12): a(f"v_mov_b64 {vr(AQ+2*i,2)}, 0")
    a("s_waitcnt vmcnt(0)")
    a.label(f"CH_{tag}_GOT")
    stamp(a, 1)
    a("ds_write_b128 v5, v[112:115]")
    a("ds_write_b128 v5, v[116:119] offset:1024")
    a("s_waitcnt lgkmcnt(0)")
    a("s_barrier")
    for i in range(8):
        L.issue(f"ds_read_b128 {vr(MF+4*i,4)}, v6 offset:{i*1024}", ("m", i))
    stamp(a, 2)
    if FUSED:
        a("s_cmp_eq_u32 s7, 0")
        a(f"s_cbranch_scc1 CH_{tag}_NOMF")
        mflag_store(a, 120)
        a.label(f"CH_{tag}_NOMF")
    a("s_add_u32 s25, s7, 3"); a("s_and_b32 s25, s25, 3"); a("s_lshl_b32 s25, s25, 13")
    a(f"s_add_u32 s25, s25, {OFF_MEM}")
    a("s_add_u32 s36, s4, s25"); a("s_addc_u32 s37, s5, 0")
    a("v_mov_b32 v120, -1")
    a("s_mov_b64 exec, s[38:39]")
    a(f"global_store_dword v14, v120, s[36:37]{sc}")
    a("s_mov_b64 exec, -1")
    a("s_lshr_b32 s30, s7, 2"); a("s_and_b32 s30, s30, 1"); a("s_sub_u32 s31, 0, s30")
    for u in range(8):
        L.wait(("m", u))
        A = vr(MF+4*u, 4)
        for t in range(2):
            a(f"v_smfmac_f32_16x16x64_bf16 {vr(AQ+4*t,4)}, {A}, {ar((u*2+t)*8,8)}, {IDX}")
        for t in range(2):
            a(f"v_smfmac_f32_16x16x64_bf16 {vr(AK+4*t,4)}, {A}, {ar(128+(u*2+t)*8,8)}, {IDX}")
    stamp(a, 3)
    vstate = {"i": 0}
    def vnext(n):
        for _ in range(n):
            idx = vstate["i"]
            if idx >= 16: return
            u, t = idx >> 1, idx & 1
            a(f"v_smfmac_f32_16x16x64_bf16 {vr(AV+4*t,4)}, {vr(MF+4*u,4)}, {vr(128+(u*2+t)*8,8)}, {IDX}")
            vstate["i"] = idx + 1
    vnext(2)
    a("s_nop 1")
    for t in range(2):
        for e in range(2):
            a(f"v_add_f32 v{AQ+4*t+e}, v{AQ+4*t+e}, v{AQ+4*t+2+e}")
            a(f"v_add_f32 v{AK+4*t+e}, v{AK+4*t+e}, v{AK+4*t+2+e}")
        a(f"v_cvt_pk_bf16_f32 v{80+2*t}, v{AQ+4*t}, v{AQ+4*t+1}")
        a(f"v_cvt_pk_bf16_f32 v{81+2*t}, v{AK+4*t}, v{AK+4*t+1}")
        if t == 0: vnext(1)
    a("s_nop 1")
    a("v_mfma_f32_16x16x16_bf16 v[84:87], v[80:81], v[72:73], 0")
    a("v_mfma_f32_16x16x16_bf16 v[88:91], v[82:83], v[72:73], 0")
    vnext(2)
    a("s_nop 1")
    a("v_cvt_pk_bf16_f32 v92, v84, v85")
    a("v_cvt_pk_bf16_f32 v93, v86, v87")
    a("v_cvt_pk_bf16_f32 v94, v88, v89")
    a("v_cvt_pk_bf16_f32 v95, v90, v91")
    a("s_nop 1")
    a("v_mfma_f32_16x16x32_bf16 v[112:115], v[92:95], v[92:95], 0")
    a(f"v_mfma_f32_16x16x32_bf16 v[116:119], {vr(KX,4)}, v[92:95], 0")
    a(f"v_mfma_f32_16x16x32_bf16 v[120:123], {vr(KX+4,4)}, v[92:95], 0")
    a("s_mov_b64 exec, s[44:45]")
    a("global_store_dwordx4 v75, v[92:95], s[16:17]" + (" sc1" if FUSED else ""))
    a("s_mov_b64 exec, -1")
    vnext(2)
    a("s_mov_b64 exec, s[20:21]")
    L.issue("ds_write_b128 v7, v[112:115]")
    L.issue("ds_write_b128 v7, v[116:119] offset:576")
    L.issue("ds_write_b128 v7, v[120:123] offset:1152")
    a("s_mov_b64 exec, -1")
    a("s_cmp_eq_u32 s7, 63")
    a(f"s_cbranch_scc1 CH_{tag}_NOPFK")
    if FUSED:
        a("s_and_b32 s25, s7, 7")
        a("s_cmp_lg_u32 s25, 7")
        a(f"s_cbranch_scc1 CH_{tag}_KVOK")
        kvflag_poll(a, f"CH_{tag}_KVF", 84)
        a.label(f"CH_{tag}_KVOK")
    pf_k()
    a.label(f"CH_{tag}_NOPFK")
    vnext(2)
    L.waitall()
    a("s_barrier")
    stamp(a, 4)
    for w in range(4):
        L.issue(f"ds_read_b128 {vr(T+4*w,4)}, v8 offset:{w*2304}", ("s", w))
    BUF = [48, 56, 64, 80, 88]
    def wread(x):
        nt, i = x >> 1, x & 1
        b = BUF[x % 5]
        base = "v1" if i else "v11"
        L.issue(f"ds_read_b128 {vr(b,4)}, {base} offset:{nt*1024}", ("w", x))
        L.issue(f"ds_read_b128 {vr(b+4,4)}, {base} offset:{32768+nt*1024}", ("w", x))
    for x in range(2): wread(x)
    vnext(16)
    q = " sc1" if FUSED else ""
    fill = []
    for i in range(4): fill.append(f"v_mov_b64 {vr(MF+2*i,2)}, 0")
    for t in range(2):
        for e in range(2):
            fill.append(f"v_add_f32 v{AV+4*t+e}, v{AV+4*t+e}, v{AV+4*t+2+e}")
    for t in range(2):
        fill.append(f"v_cvt_pk_bf16_f32 v{80+2*t}, v{AV+4*t}, v{AV+4*t+1}")
        fill.append(f"v_mov_b32 v{81+2*t}, 0")
    fill.append("global_store_dword v76, v80, s[18:19]" + q)
    fill.append("global_store_dword v76, v82, s[18:19] offset:512" + q)
    for i in range(4, 16): fill.append(f"v_mov_b64 {vr(MF+2*i,2)}, 0")
    L.wait(("s", 3))
    S = T
    t0, t1, tm, tc = 124, 125, 126, 127
    vl = []
    for r in range(4):
        vl.append(f"v_add_f32 v{S+r}, v{S+r}, v{S+4+r}")
        vl.append(f"v_add_f32 v{S+8+r}, v{S+8+r}, v{S+12+r}")
    for r in range(4):
        vl.append(f"v_add_f32 v{S+r}, v{S+r}, v{S+8+r}")
    def rnd():
        vl.append(f"v_cvt_pk_bf16_f32 v{t0}, v{S}, v{S+1}")
        vl.append(f"v_cvt_pk_bf16_f32 v{t1}, v{S+2}, v{S+3}")
        vl.append(f"v_lshlrev_b32 v{S}, 16, v{t0}")
        vl.append(f"v_and_b32 v{S+1}, 0xffff0000, v{t0}")
        vl.append(f"v_lshlrev_b32 v{S+2}, 16, v{t1}")
        vl.append(f"v_and_b32 v{S+3}, 0xffff0000, v{t1}")
    rnd()
    for r in range(4): vl.append(f"v_mul_f32 v{S+r}, 0x{SCALE:08x}, v{S+r}")
    rnd()
    vl.append(f"v_mov_b32 v{tc}, 0xff800000")
    for r in range(4): vl.append(f"v_cndmask_b32 v{S+r}, v{tc}, v{S+r}, s[22:23]")
    vl.append(f"v_max3_f32 v{tm}, v{S}, v{S+1}, v{S+2}")
    vl.append(f"v_max_f32 v{tm}, v{tm}, v{S+3}")
    ctl = ["quad_perm:[1,0,3,2]", "quad_perm:[2,3,0,1]", "row_half_mirror", "row_mirror"]
    for c in ctl:
        vl.append("ZERO2")
        vl.append(f"v_max_f32_dpp v{tm}, v{tm}, v{tm} {c} row_mask:0xf bank_mask:0xf")
    vl.append(f"v_mov_b32 v{tc}, 0x{LOG2E:08x}")
    for r in range(4):
        vl.append(f"v_sub_f32 v{S+r}, v{S+r}, v{tm}")
        vl.append(f"v_mul_f32 v{S+r}, v{tc}, v{S+r}")
        vl.append(f"v_exp_f32 v{S+r}, v{S+r}")
    vl.append("s_nop 0")
    vl.append(f"v_add_f32 v{tm}, v{S}, v{S+1}")
    vl.append(f"v_add_f32 v{tc}, v{S+2}, v{S+3}")
    vl.append(f"v_add_f32 v{tm}, v{tm}, v{tc}")
    for c in ctl:
        vl.append("ZERO2")
        vl.append(f"v_add_f32_dpp v{tm}, v{tm}, v{tm} {c} row_mask:0xf bank_mask:0xf")
    vl.append(f"v_rcp_f32 v{tm}, v{tm}")
    vl.append("s_nop 0")
    for r in range(4): vl.append(f"v_mul_f32 v{S+r}, v{S+r}, v{tm}")
    vl.append(f"v_cvt_pk_bf16_f32 v{t0}, v{S}, v{S+1}")
    vl.append(f"v_cvt_pk_bf16_f32 v{t1}, v{S+2}, v{S+3}")
    for ins in vl:
        if ins == "ZERO2":
            for _ in range(2): a(fill.pop(0))
        else:
            a(ins)
    a("s_mov_b64 exec, s[32:33]")
    L.issue(f"ds_write_b64 v0, v[{t0}:{t1}]")
    a("s_mov_b64 exec, -1")
    wread(2)
    while fill: a(fill.pop(0))
    a("s_add_u32 s16, s16, 131072"); a("s_addc_u32 s17, s17, 0")
    a("s_add_u32 s18, s18, 131072"); a("s_addc_u32 s19, s19, 0")
    L.waitall()
    a("s_barrier")
    L.issue("ds_read_b128 v[112:115], v15", "px")
    L.issue("ds_read_b32 v116, v77", "pm")
    a("v_mov_b32 v117, 0")
    a("s_cmp_eq_u32 s7, 63")
    a("s_cbranch_scc1 CH_FIN")
    L.wait("px", "pm")
    stamp(a, 5)
    for t in range(2):
        a(f"v_mfma_f32_16x16x32_bf16 {vr(88+4*t,4)}, {vr(VX+4*t,4)}, v[112:115], 0")
    for t in range(2):
        a(f"v_mfma_f32_16x16x16_bf16 {vr(88+4*t,4)}, {vr(80+2*t,2)}, v[116:117], {vr(88+4*t,4)}")
    pf_v()
    a("s_nop 5")
    a("v_cvt_pk_bf16_f32 v120, v88, v89")
    a("v_cvt_pk_bf16_f32 v122, v90, v91")
    a("v_cvt_pk_bf16_f32 v121, v92, v93")
    a("v_cvt_pk_bf16_f32 v123, v94, v95")
    a("s_mov_b64 exec, s[20:21]")
    L.issue("ds_write2_b64 v9, v[120:121], v[122:123] offset0:0 offset1:2")
    a("s_mov_b64 exec, -1")
    for x in range(3, 5): wread(x)
    L.waitall()
    a("s_barrier")
    for i in range(2):
        L.issue(f"ds_read_b128 {vr(T+4*i,4)}, v10 offset:{i*1024}", ("o", i))
    stamp(a, 6)
    WA = MF
    a("s_and_b32 s25, s7, 3")
    a("s_lshl_b32 s25, s25, 19")
    a(f"s_add_u32 s25, s25, {OFF_P}")
    a("s_add_u32 s10, s4, s25"); a("s_addc_u32 s11, s5, 0")
    def pstore(p):
        A = WA + 8*p; B = A + 4
        a(f"v_add_f32 v{A}, v{A}, v{A+2}")
        a(f"v_add_f32 v{A+1}, v{A+1}, v{A+3}")
        a(f"v_add_f32 v{A+2}, v{B}, v{B+2}")
        a(f"v_add_f32 v{A+3}, v{B+1}, v{B+3}")
        for r in range(4):
            a(f"v_and_or_b32 v{A+r}, v{A+r}, -2, s30")
        if p: a(f"v_add_u32 v{A+4}, {p*4096}, v12")
        a(f"global_store_dwordx4 v{12 if p == 0 else A+4}, {vr(A,4)}, s[10:11]{sc}")
    for x in range(16):
        nt, i = x >> 1, x & 1
        b = BUF[x % 5]
        if x < 2: L.wait(("o", i), ("w", x))
        else: L.wait(("w", x))
        a(f"v_smfmac_f32_16x16x64_bf16 {vr(WA+4*nt,4)}, {vr(T+4*i,4)}, {vr(b,8)}, {IDX}")
        if x + 5 < 16: wread(x + 5)
        if x % 4 == 1 and x >= 4:
            pstore(x//4 - 1)
    a("s_nop 7")
    pstore(3)
    stamp(a, 7)
    for _ in range(int(os.environ.get("PDELAY", "4"))): a("s_nop 15")
    a.label(f"CH_{tag}_PPOLL")
    if PROF: a("s_add_u32 s70, s70, 1")
    for i in range(4):
        a(f"global_load_dwordx4 {vr(16+4*i,4)}, v13, s[10:11] offset:{i*1024} sc1")
    a("s_waitcnt vmcnt(0)")
    for i in range(8): a(f"v_bitop3_b32 v{32+i}, v{16+2*i}, v{17+2*i}, s31 bitop3:0x7e")
    a("v_or3_b32 v32, v32, v33, v34"); a("v_or3_b32 v35, v35, v36, v37"); a("v_or3_b32 v32, v32, v38, v39"); a("v_or_b32 v32, v32, v35")
    a("v_and_b32 v32, 1, v32")
    a("v_cmp_ne_u32 vcc, 0, v32")
    a(f"s_cbranch_vccnz CH_{tag}_PPOLL")
    stamp(a, 8)
    for c in range(4):
        a(f"v_add_f32 v{16+c}, v{16+c}, v{20+c}")
        a(f"v_add_f32 v{24+c}, v{24+c}, v{28+c}")
    for c in range(4):
        a(f"v_add_f32 v{16+c}, v{16+c}, v{24+c}")
    a("s_nop 0")
    a("v_permlane32_swap_b32 v16, v18"); a("v_permlane32_swap_b32 v17, v19")
    a("s_nop 0")
    a("v_add_f32 v16, v16, v18"); a("v_add_f32 v17, v17, v19")
    a("s_nop 1")
    a("v_permlane16_swap_b32 v16, v17")
    a("s_nop 0")
    a("v_add_f32 v16, v16, v17")
    a("s_nop 1")
    a("v_add_f32_dpp v16, v16, v16 row_ror:8 row_mask:0xf bank_mask:0xf")
    a("s_nop 1")
    a("v_mov_b32_dpp v17, v16 quad_perm:[1,1,3,3] row_mask:0xf bank_mask:0xf")
    a("v_cvt_pk_bf16_f32 v16, v16, v17")
    a("v_min_u32 v16, -2, v16")
    a("s_mov_b64 exec, s[38:39]")
    a(f"global_store_dword v14, v16, s[26:27]{sc}")
    if DBGMEM:
        a("s_lshl_b32 s25, s7, 13")
        a(f"s_add_u32 s25, s25, {OFF_MEMH + 8192}")
        a("s_add_u32 s36, s4, s25"); a("s_addc_u32 s37, s5, 0")
        a(f"global_store_dword v14, v16, s[36:37]")
    a("s_mov_b64 exec, -1")
    a("s_mov_b64 s[8:9], s[26:27]")
    a("s_add_u32 s7, s7, 1")
    a("s_add_u32 s25, s7, 1")
    a("s_and_b32 s25, s25, 3")
    a("s_lshl_b32 s25, s25, 13")
    a(f"s_add_u32 s25, s25, {OFF_MEM}")
    a("s_add_u32 s26, s4, s25"); a("s_addc_u32 s27, s5, 0")
    a(f"s_branch CH_{tag}_LOOP")
```

```python
from common import *

def gen_prep(a, fused=False):
    name = "prep_kernel"
    M0 = False
    NLN, NPK, NIN, NFL, NM0 = 512, 256, 80, 17, (2 if M0 else 0)
    NT = NLN+NPK+NIN+NFL+NM0
    _a = a
    if fused:
        def a(txt):
            txt = txt.replace("s2,", "s48,").replace("s_endpgm", "s_branch PREP_NEXT")
            if txt.startswith("global_store"): txt += " sc1"
            _a(txt)
        a.label = _a.label
        _a("s_mov_b32 s49, s40")
        _a.label("PREP_LOOP")
        _a(f"s_cmp_ge_u32 s49, {NT}")
        _a("s_cbranch_scc1 PREP_DONE")
        _a(f"s_add_u32 s48, s49, {NLN}")
        _a(f"s_cmp_ge_u32 s48, {NT}")
        _a("s_cbranch_scc0 PREP_GO")
        _a(f"s_sub_u32 s48, s48, {NT}")
        _a.label("PREP_GO")
    else:
        a.begin(name)
        a(f"s_cmp_ge_u32 s2, {NLN+NPK+NIN+NFL+NM0}")
        a("s_cbranch_scc1 PREP_END")
        load_ptr(a, 4, "ws")
        a("v_lshrrev_b32 v1, 6, v0")
        a("v_and_b32 v2, 63, v0")
        a("s_nop 0")
        a("v_readfirstlane_b32 s3, v1")
    a(f"s_cmp_ge_u32 s2, {NLN}")
    a("s_cbranch_scc1 PREP_PACK")
    load_ptr(a, 6, "x")
    load_ptr(a, 8, "wr")
    a("s_lshl_b32 s10, s2, 2")
    a("s_add_u32 s10, s10, s3")
    a("v_lshlrev_b32 v3, 4, v2")
    a("s_lshl_b32 s11, s10, 10")
    a("v_add_u32 v4, s11, v3")
    a("s_waitcnt lgkmcnt(0)")
    a("global_load_dwordx4 v[8:11], v4, s[6:7]")
    a("global_load_dwordx4 v[12:15], v3, s[8:9]")
    a("s_waitcnt vmcnt(0)")
    for i in range(4):
        a(f"v_lshlrev_b32 v{16+2*i}, 16, v{8+i}")
        a(f"v_and_b32 v{17+2*i}, 0xffff0000, v{8+i}")
        a(f"v_lshlrev_b32 v{24+2*i}, 16, v{12+i}")
        a(f"v_and_b32 v{25+2*i}, 0xffff0000, v{12+i}")
    a("v_add_f32 v32, v16, v17")
    for i in range(2, 8):
        a(f"v_add_f32 v32, v32, v{16+i}")
    wave_reduce(a, 32, 33)
    a("v_mul_f32 v32, 0x3b000000, v32")
    a("v_sub_f32 v34, v16, v32")
    a("v_mul_f32 v35, v34, v34")
    for i in range(1, 8):
        a(f"v_sub_f32 v34, v{16+i}, v32")
        a("v_fmac_f32 v35, v34, v34")
    wave_reduce(a, 35, 33)
    a("v_mul_f32 v35, 0x3b000000, v35")
    round_bf16(a, 35)
    a("v_add_f32 v35, 0x3727c5ac, v35")
    round_bf16(a, 35)
    a("v_sqrt_f32 v35, v35")
    a("s_nop 0")
    round_bf16(a, 35)
    a("v_rcp_f32 v35, v35")
    round_bf16(a, 32)
    for i in range(8):
        a(f"v_sub_f32 v{16+i}, v{16+i}, v32")
    for i in range(4):
        a(f"v_cvt_pk_bf16_f32 v{8+i}, v{16+2*i}, v{17+2*i}")
    for i in range(4):
        a(f"v_lshlrev_b32 v{16+2*i}, 16, v{8+i}")
        a(f"v_and_b32 v{17+2*i}, 0xffff0000, v{8+i}")
    for i in range(8):
        a(f"v_mul_f32 v{16+i}, v{16+i}, v35")
    for i in range(4):
        a(f"v_cvt_pk_bf16_f32 v{8+i}, v{16+2*i}, v{17+2*i}")
    for i in range(4):
        a(f"v_lshlrev_b32 v{16+2*i}, 16, v{8+i}")
        a(f"v_and_b32 v{17+2*i}, 0xffff0000, v{8+i}")
    a("v_mul_f32 v36, v16, v24")
    for i in range(1, 8):
        a(f"v_fmac_f32 v36, v{16+i}, v{24+i}")
    wave_reduce(a, 36, 33)
    round_bf16(a, 36)
    a(f"v_add_u32 v5, {OFF_XN}, v4")
    a("global_store_dwordx4 v5, v[8:11], s[4:5]")
    a("s_lshr_b32 s12, s10, 4")
    a("s_and_b32 s13, s10, 15")
    a("s_lshl_b32 s12, s12, 14")
    a("s_lshl_b32 s13, s13, 4")
    a("s_add_u32 s12, s12, s13")
    a(f"s_add_u32 s12, s12, {OFF_XNF}")
    a("v_lshlrev_b32 v5, 8, v2")
    a("v_add_u32 v5, s12, v5")
    a("global_store_dwordx4 v5, v[8:11], s[4:5]")
    a("s_lshl_b32 s12, s10, 2")
    a(f"s_add_u32 s12, s12, {OFF_R}")
    a("v_mov_b32 v5, s12")
    a("v_cmp_eq_u32 vcc, 0, v2")
    a("s_and_saveexec_b64 s[14:15], vcc")
    a("global_store_dword v5, v36, s[4:5]")
    a("s_endpgm")
    a.label("PREP_PACK")
    a(f"s_cmp_ge_u32 s2, {NLN+NPK}")
    a("s_cbranch_scc1 PREP_INIT")
    a(f"s_sub_u32 s10, s2, {NLN}")
    a("s_lshl_b32 s10, s10, 2")
    a("s_add_u32 s10, s10, s3")
    a("v_and_b32 v3, 15, v2")
    a("v_lshrrev_b32 v4, 4, v2")
    a("s_cmp_ge_u32 s10, 768")
    a("s_cbranch_scc1 PREP_PACK_WO")
    a("s_lshr_b32 s11, s10, 8")
    a("s_lshl_b32 s12, s11, 3")
    a("s_add_u32 s12, s12, 16")
    a("s_load_dwordx2 s[6:7], s[0:1], s12")
    a("s_and_b32 s13, s10, 255")
    a("s_lshl_b32 s14, s13, 5")
    a("v_lshlrev_b32 v5, 1, v3")
    a("v_add_u32 v5, s14, v5")
    a("v_lshlrev_b32 v6, 16, v4")
    a("v_add_u32 v5, v5, v6")
    for j in range(8):
        a(f"v_add_u32 v{8+j}, {j*8192}, v5")
    a("s_lshr_b32 s14, s13, 3")
    a("s_and_b32 s15, s13, 7")
    a("s_lshl_b32 s14, s14, 17")
    a("s_lshl_b32 s15, s15, 10")
    a("s_add_u32 s14, s14, s15")
    a("s_lshl_b32 s15, s11, 22")
    a("s_add_u32 s14, s14, s15")
    a(f"s_add_u32 s14, s14, {OFF_WQF}")
    a("v_lshlrev_b32 v7, 4, v2")
    a("v_add_u32 v7, s14, v7")
    a("s_mov_b32 s16, 262144")
    a("s_mov_b32 s17, 8192")
    a("s_branch PREP_PACK_LOOP")
    a.label("PREP_PACK_WO")
    load_ptr(a, 6, "Wo")
    a("s_sub_u32 s10, s10, 768")
    a("s_lshr_b32 s13, s10, 1")
    a("s_and_b32 s15, s10, 1")
    a("s_lshl_b32 s14, s13, 15")
    a("s_lshl_b32 s11, s15, 9")
    a("s_add_u32 s14, s14, s11")
    a("v_lshlrev_b32 v5, 1, v3")
    a("v_add_u32 v5, s14, v5")
    a("v_lshlrev_b32 v6, 12, v4")
    a("v_add_u32 v5, v5, v6")
    for j in range(8):
        pj = j if j < 4 else 16 + j - 4
        a(f"v_add_u32 v{8+j}, {pj*1024}, v5")
    a("s_lshl_b32 s14, s13, 15")
    a("s_lshl_b32 s15, s15, 14")
    a("s_add_u32 s14, s14, s15")
    a(f"s_add_u32 s14, s14, {OFF_WOF}")
    a("v_lshlrev_b32 v7, 4, v2")
    a("v_add_u32 v7, s14, v7")
    a("s_mov_b32 s16, 32")
    a("s_mov_b32 s17, 1024")
    a.label("PREP_PACK_LOOP")
    a("s_waitcnt lgkmcnt(0)")
    for rnd in range(2):
        for it in range(8):
            for j in range(8):
                a(f"global_load_ushort v{24+it*8+j}, v{8+j}, s[6:7]")
            a("s_add_u32 s6, s6, s16")
            a("s_addc_u32 s7, s7, 0")
        for it in range(8):
            a(f"s_waitcnt vmcnt({8*(7-it) + it})")
            for j in range(4):
                a(f"v_lshl_or_b32 v{88+(it&1)*4+j}, v{24+it*8+2*j+1}, 16, v{24+it*8+2*j}")
            a(f"global_store_dwordx4 v7, {vr(88+(it&1)*4,4)}, s[4:5]")
            a("v_add_u32 v7, s17, v7")
        a("s_nop 1")
    a("s_endpgm")
    a.label("PREP_INIT")
    a(f"s_cmp_ge_u32 s2, {NLN+NPK+NIN}")
    a("s_cbranch_scc1 PREP_FLG")
    a(f"s_sub_u32 s10, s2, {NLN+NPK}")
    a("s_lshl_b32 s10, s10, 12")
    a("v_lshlrev_b32 v3, 4, v0")
    a("v_add_u32 v3, s10, v3")
    a("v_mov_b32 v8, -1")
    a("v_mov_b32 v9, -1")
    a("v_mov_b32 v10, -1")
    a("v_mov_b32 v11, -1")
    a("s_waitcnt lgkmcnt(0)")
    for p in range(8):
        a(f"v_add_u32 v4, {p*327680}, v3")
        a(f"v_add_u32 v5, {OFF_MEM}, v4")
        a(f"v_add_u32 v6, {OFF_P-524288}, v4")
        a(f"v_cmp_gt_u32 vcc, 524288, v4")
        a("s_nop 1")
        a("v_cndmask_b32 v5, v6, v5, vcc")
        if p == 0 and M0:
            a("v_cmp_le_u32 vcc, 8192, v4")
            a("s_and_saveexec_b64 s[14:15], vcc")
        a("global_store_dwordx4 v5, v[8:11], s[4:5]")
        if p == 0 and M0:
            a("s_mov_b64 exec, s[14:15]")
    a("s_endpgm")
    a.label("PREP_FLG")
    a(f"s_cmp_ge_u32 s2, {NLN+NPK+NIN+NFL}")
    a("s_cbranch_scc1 PREP_M0")
    a(f"s_sub_u32 s10, s2, {NLN+NPK+NIN}")
    a("s_lshl_b32 s10, s10, 12")
    a(f"s_add_u32 s10, s10, {OFF_FLG}")
    a("v_lshlrev_b32 v3, 4, v0")
    a("v_add_u32 v3, s10, v3")
    a("v_mov_b32 v8, 0"); a("v_mov_b32 v9, 0"); a("v_mov_b32 v10, 0"); a("v_mov_b32 v11, 0")
    a("s_waitcnt lgkmcnt(0)")
    a("global_store_dwordx4 v3, v[8:11], s[4:5]")
    a("s_endpgm")
    a.label("PREP_M0")
    load_ptr(a, 6, "mem0")
    a(f"s_sub_u32 s10, s2, {NLN+NPK+NIN+NFL}")
    a("s_lshl_b32 s10, s10, 8")
    a("v_add_u32 v3, s10, v0")
    a("v_lshrrev_b32 v4, 6, v3")
    a("v_lshlrev_b32 v4, 7, v4")
    a("v_bfe_u32 v5, v3, 3, 1")
    a("v_lshlrev_b32 v5, 6, v5")
    a("v_add_u32 v4, v4, v5")
    a("v_bfe_u32 v5, v3, 4, 2")
    a("v_lshlrev_b32 v5, 4, v5")
    a("v_add_u32 v4, v4, v5")
    a("v_and_b32 v5, 7, v3")
    a("v_lshlrev_b32 v5, 10, v5")
    a("v_add_u32 v4, v4, v5")
    a("v_lshlrev_b32 v6, 4, v3")
    a(f"v_add_u32 v6, {OFF_MEM}, v6")
    a("s_waitcnt lgkmcnt(0)")
    a("global_load_dwordx4 v[8:11], v4, s[6:7]")
    a("s_waitcnt vmcnt(0)")
    for i in range(4): a(f"v_min_u32 v{8+i}, -2, v{8+i}")
    a("global_store_dwordx4 v6, v[8:11], s[4:5]")
    if fused:
        _a.label("PREP_NEXT")
        _a("s_mov_b64 exec, -1")
        _a("s_add_u32 s49, s49, 224")
        _a("s_branch PREP_LOOP")
        _a.label("PREP_DONE")
        return
    a.label("PREP_END")
    a.end(name, 96, 96)
```

```python
from common import *
import re
OFF_XN2 = OFF_XNF
SELW = 224

def remap(a, off, lo=3):
    def f(m):
        n = int(m.group(1)); return f"v{n+off}" if n >= lo else m.group(0)
    def g(m):
        x, y = int(m.group(1)), int(m.group(2))
        return f"v[{x+off}:{y+off}]" if x >= lo else m.group(0)
    def w(txt):
        txt = re.sub(r"v\[(\d+):(\d+)\]", g, txt)
        txt = re.sub(r"\bv(\d+)\b", f, txt)
        a(txt)
    w.label = a.label
    return w

def ln_row(a, sc):
    for i in range(4):
        a(f"v_lshlrev_b32 v{16+2*i}, 16, v{8+i}")
        a(f"v_and_b32 v{17+2*i}, 0xffff0000, v{8+i}")
        a(f"v_lshlrev_b32 v{24+2*i}, 16, v{12+i}")
        a(f"v_and_b32 v{25+2*i}, 0xffff0000, v{12+i}")
    a("v_add_f32 v32, v16, v17")
    for i in range(2, 8):
        a(f"v_add_f32 v32, v32, v{16+i}")
    wave_reduce(a, 32, 33)
    a("v_mul_f32 v32, 0x3b000000, v32")
    a("v_sub_f32 v34, v16, v32")
    a("v_mul_f32 v35, v34, v34")
    for i in range(1, 8):
        a(f"v_sub_f32 v34, v{16+i}, v32")
        a("v_fmac_f32 v35, v34, v34")
    wave_reduce(a, 35, 33)
    a("v_mul_f32 v35, 0x3b000000, v35")
    round_bf16(a, 35)
    a("v_add_f32 v35, 0x3727c5ac, v35")
    round_bf16(a, 35)
    a("v_sqrt_f32 v35, v35")
    a("s_nop 0")
    round_bf16(a, 35)
    a("v_rcp_f32 v35, v35")
    round_bf16(a, 32)
    for i in range(8):
        a(f"v_sub_f32 v{16+i}, v{16+i}, v32")
    for i in range(4):
        a(f"v_cvt_pk_bf16_f32 v{8+i}, v{16+2*i}, v{17+2*i}")
    for i in range(4):
        a(f"v_lshlrev_b32 v{16+2*i}, 16, v{8+i}")
        a(f"v_and_b32 v{17+2*i}, 0xffff0000, v{8+i}")
    for i in range(8):
        a(f"v_mul_f32 v{16+i}, v{16+i}, v35")
    for i in range(4):
        a(f"v_cvt_pk_bf16_f32 v{8+i}, v{16+2*i}, v{17+2*i}")
    for i in range(4):
        a(f"v_lshlrev_b32 v{16+2*i}, 16, v{8+i}")
        a(f"v_and_b32 v{17+2*i}, 0xffff0000, v{8+i}")
    a("v_mul_f32 v36, v16, v24")
    for i in range(1, 8):
        a(f"v_fmac_f32 v36, v{16+i}, v{24+i}")
    wave_reduce(a, 36, 33)
    round_bf16(a, 36)
    a(f"v_add_u32 v5, {OFF_XN}, v4")
    a("global_store_dwordx4 v5, v[8:11], s[4:5]" + sc)
    a("ds_write_b128 v37, v[8:11]")
    a("s_lshl_b32 s12, s10, 2")
    a(f"s_add_u32 s12, s12, {OFF_R}")
    a("v_mov_b32 v5, s12")
    a("s_mov_b64 exec, 1")
    a("global_store_dword v5, v36, s[4:5]" + sc)
    a("s_mov_b64 exec, -1")

NPRE = 16
TB = 131072
def pre_loads(a):
    load_ptr(a, 8, "x"); load_ptr(a, 50, "wr")
    a("s_lshl_b32 s52, s40, 4"); a("s_lshl_b32 s10, s3, 2"); a("s_add_u32 s52, s52, s10")
    a("v_lshlrev_b32 v192, 4, v2")
    a("s_lshl_b32 s10, s52, 10")
    a("v_add_u32 v193, s10, v192")
    a("s_waitcnt lgkmcnt(0)")
    a("s_cmp_ge_u32 s40, 128")
    a("s_cbranch_scc1 PRE_NOLD")
    a("global_load_dwordx4 v[212:215], v192, s[50:51]")
    for r in range(4):
        a(f"global_load_dwordx4 {vr(196+4*r,4)}, v193, s[8:9] offset:{1024*r}")
    a.label("PRE_NOLD")

def pre_init(a):
    sc = " sc1"
    a("s_sub_u32 s52, s40, 128"); a("s_lshl_b32 s52, s52, 2"); a("s_add_u32 s52, s52, s3")
    a("v_mov_b32 v212, -1"); a("v_mov_b32 v213, -1"); a("v_mov_b32 v214, -1"); a("v_mov_b32 v215, -1")
    for i in range(6):
        a(f"s_add_u32 s10, s52, {384*i}")
        if i == 5:
            a("s_cmp_ge_u32 s10, 2048"); a("s_cbranch_scc1 PRE_NOP2")
        a("s_lshl_b32 s10, s10, 10")
        a(f"s_add_u32 s10, s10, {OFF_P}")
        a("v_add_u32 v216, s10, v192")
        a("global_store_dwordx4 v216, v[212:215], s[4:5]" + sc)
    a.label("PRE_NOP2")
    a("s_cmp_ge_u32 s52, 32"); a("s_cbranch_scc1 PRE_NOMEM")
    a("s_lshl_b32 s10, s52, 10"); a(f"s_add_u32 s10, s10, {OFF_MEM}")
    a("v_add_u32 v216, s10, v192")
    a("global_store_dwordx4 v216, v[212:215], s[4:5]" + sc)
    a.label("PRE_NOMEM")

def pre_block(a):
    sc = " sc1"
    b = remap(a, 144)
    a("v_lshrrev_b32 v181, 2, v2")
    a("v_lshlrev_b32 v181, 10, v181")
    a("v_and_b32 v182, 3, v2")
    a("v_lshlrev_b32 v182, 8, v182")
    a("v_add_u32 v181, v181, v182")
    a("s_lshl_b32 s10, s3, 6")
    a(f"s_add_u32 s10, s10, {TB}")
    a("v_add_u32 v181, s10, v181")
    for r in range(4):
        a(f"s_add_u32 s10, s52, {r}")
        if r == 0: a(f"s_waitcnt vmcnt({NPRE})")
        for i in range(4):
            a(f"v_mov_b32 v{152+i}, v{196+4*r+i}")
            a(f"v_mov_b32 v{156+i}, v{212+i}")
        a(f"v_add_u32 v148, {1024*r}, v193")
        if r: a("v_add_u32 v181, 16, v181")
        ln_row(b, sc)
    a("s_waitcnt lgkmcnt(0)")
    a("s_barrier")
    a("s_lshl_b32 s10, s3, 12")
    a("v_add_u32 v181, s10, v192")
    a(f"v_add_u32 v182, {TB}, v181")
    for i in range(4):
        a(f"ds_read_b128 {vr(196+4*i,4)}, v182 offset:{1024*i}")
    a("s_lshl_b32 s10, s40, 14")
    a(f"s_add_u32 s10, s10, {OFF_XNF}")
    a("v_add_u32 v181, s10, v181")
    for i in range(4):
        a(f"s_waitcnt lgkmcnt({3-i})")
        a(f"global_store_dwordx4 v181, {vr(196+4*i,4)}, s[4:5] offset:{1024*i}" + sc)

def qkv_stage_addr(a):
    a("s_lshr_b32 s13, s11, 5")
    a("s_and_b32 s14, s11, 31")
    a("s_lshl_b32 s12, s13, 3")
    a("s_add_u32 s12, s12, 16")
    a("s_load_dwordx2 s[6:7], s[0:1], s12")
    a("v_bfe_u32 v4, v2, 2, 2")
    a("v_lshlrev_b32 v4, 3, v4")
    a("v_and_b32 v5, 3, v2")
    a("v_add_u32 v4, v4, v5")
    a("v_lshlrev_b32 v4, 13, v4")
    a("v_lshrrev_b32 v5, 4, v2")
    a("v_lshlrev_b32 v5, 4, v5")
    a("v_add_u32 v4, v4, v5")
    a("v_add_u32 v5, 32768, v4")
    a("s_lshl_b32 s15, s14, 8")
    a("s_lshl_b32 s16, s3, 20")
    a("s_add_u32 s15, s15, s16")
    a("s_waitcnt lgkmcnt(0)")
    a("s_add_u32 s6, s6, s15"); a("s_addc_u32 s7, s7, 0")

def qkv_stage_loads(a, q0=0, q1=4):
    for q in range(q0, q1):
        for cp in range(4):
            b = 16 + (q*4+cp)*8
            a(f"global_load_dwordx4 {vr(b,4)}, v4, s[6:7] offset:{cp*64}")
            a(f"global_load_dwordx4 {vr(b+4,4)}, v5, s[6:7] offset:{cp*64}")
        a("s_add_u32 s6, s6, 262144"); a("s_addc_u32 s7, s7, 0")

def qkv_stage(a):
    a("s_lshl_b32 s12, s10, 2")
    a("s_add_u32 s12, s12, s3")
    a("v_lshlrev_b32 v3, 4, v2")
    a("s_lshl_b32 s15, s3, 15")
    a("v_add_u32 v4, s15, v3")
    DT = [144, 160]
    units = [(q, cp) for q in range(4) for cp in range(4)]
    def finish(i):
        q, cp = units[i]
        tr_pack(a, DT[i & 1], 176, 180)
        a(f"ds_write_b128 v4, v[176:179] offset:{(q*8+2*cp)*1024}")
        a(f"ds_write_b128 v4, v[180:183] offset:{(q*8+2*cp+1)*1024}")
    for i, (q, cp) in enumerate(units):
        if i == 15:
            a("s_cmp_eq_u32 s55, 1"); a("s_cbranch_scc1 QS_W1")
            a("s_waitcnt vmcnt(0)"); a("s_branch QS_W2")
            a.label("QS_W1"); a("s_waitcnt vmcnt(1)"); a.label("QS_W2")
        else:
            a(f"s_waitcnt vmcnt({2*(15-i)})")
        b = 16 + i*8
        tr_unit(a, vr(b,4), vr(b+4,4), DT[i & 1], SELW)
        if i: finish(i-1)
    a("s_nop 7")
    finish(15)
    a("s_lshl_b32 s16, s12, 16")
    a(f"s_add_u32 s16, s16, {OFF_XNF}")
    a("s_add_u32 s22, s4, s16"); a("s_addc_u32 s23, s5, 0")
    for tt in range(4):
        a(f"v_add_u32 v{5+tt}, {tt*16384}, v3")
    a("v_add_u32 v9, 65536, v3")

def qkv_rest(a, pre, sc, endl):
    WB = [144, 176]
    def xreg(kk, tt):
        return ar(128 + kk*16 + tt*4, 4) if kk < 8 else vr(16 + (kk-8)*16 + tt*4, 4)
    def xloads(kk):
        for tt in range(4):
            a(f"global_load_dwordx4 {xreg(kk,tt)}, v{5+tt}, s[22:23] offset:{(kk&3)*1024}")
        if (kk & 3) == 3 and kk < 15:
            a("s_add_u32 s22, s22, 4096"); a("s_addc_u32 s23, s23, 0")
    def wreads(kk):
        for et in range(8):
            a(f"ds_read_b128 {vr(WB[kk&1]+et*4,4)}, v{3 if kk<8 else 9} offset:{((kk&7)*8+et)*1024}")
    for kk in range(15): xloads(kk)
    def body(swap):
        wreads(0)
        for kk in range(16):
            if kk == 1: xloads(15)
            a(f"s_waitcnt vmcnt({4*(14-kk) if kk == 0 else 4*(15-kk)})")
            if kk == 0: a.tl1(5)
            if kk < 15:
                wreads(kk+1)
                a("s_waitcnt lgkmcnt(8)")
            else:
                a("s_waitcnt lgkmcnt(0)")
            for tt in range(4):
                for et in range(8):
                    acc = ar((tt*8+et)*4, 4)
                    c = "0" if kk == 0 else acc
                    W = vr(WB[kk&1]+et*4, 4); X = xreg(kk, tt)
                    if swap:
                        a(f"v_mfma_f32_16x16x32_bf16 {acc}, {X}, {W}, {c}")
                    else:
                        a(f"v_mfma_f32_16x16x32_bf16 {acc}, {W}, {X}, {c}")
        a("s_nop 15")
        a.tl1(6)
        for i in range(128):
            a(f"v_accvgpr_read_b32 v{ACC+i}, a{i}")
    ACC = 16
    a("s_cmp_eq_u32 s13, 2")
    a(f"s_cbranch_scc1 {pre}_V")
    body(False)
    a("s_lshl_b32 s15, s13, 24")
    a(f"s_add_u32 s15, s15, {OFF_QF}")
    a("s_lshl_b32 s16, s12, 19")
    a("s_add_u32 s15, s15, s16")
    a("s_lshl_b32 s16, s14, 13")
    a("s_add_u32 s15, s15, s16")
    a("s_add_u32 s20, s4, s15"); a("s_addc_u32 s21, s5, 0")
    for tt in range(4):
        sgo = (tt >> 1) * 262144 + (tt & 1) * 1024
        a(f"v_add_u32 v4, {sgo}, v3")
        a(f"v_add_u32 v5, {sgo+4096}, v3")
        for w in range(4):
            t0 = ACC + (tt*8+2*w)*4; t1 = t0 + 4
            d = 144 + w*4
            a(f"v_cvt_pk_bf16_f32 v{d}, v{t0}, v{t0+1}")
            a(f"v_cvt_pk_bf16_f32 v{d+1}, v{t0+2}, v{t0+3}")
            a(f"v_cvt_pk_bf16_f32 v{d+2}, v{t1}, v{t1+1}")
            a(f"v_cvt_pk_bf16_f32 v{d+3}, v{t1+2}, v{t1+3}")
            a(f"global_store_dwordx4 v{4 if w<2 else 5}, {vr(d,4)}, s[20:21] offset:{(w&1)*2048}{sc}")
        a("s_nop 1")
    a(f"s_branch {endl}")
    a.label(f"{pre}_V")
    body(True)
    a("s_lshl_b32 s16, s12, 19")
    a(f"s_add_u32 s15, s16, {OFF_VF}")
    a("s_lshl_b32 s16, s14, 13")
    a("s_add_u32 s15, s15, s16")
    a("s_add_u32 s20, s4, s15"); a("s_addc_u32 s21, s5, 0")
    for sg in range(2):
        a(f"v_add_u32 v4, {sg*262144}, v3")
        a(f"v_add_u32 v5, {sg*262144+4096}, v3")
        for et in range(8):
            t0 = ACC + ((2*sg)*8+et)*4; t1 = ACC + ((2*sg+1)*8+et)*4
            d = 144 + (et&3)*4
            a(f"v_cvt_pk_bf16_f32 v{d}, v{t0}, v{t0+1}")
            a(f"v_cvt_pk_bf16_f32 v{d+1}, v{t0+2}, v{t0+3}")
            a(f"v_cvt_pk_bf16_f32 v{d+2}, v{t1}, v{t1+1}")
            a(f"v_cvt_pk_bf16_f32 v{d+3}, v{t1+2}, v{t1+3}")
            a(f"global_store_dwordx4 v{4 if et<4 else 5}, {vr(d,4)}, s[20:21] offset:{(et&3)*1024}{sc}")
            if et == 3: a("s_nop 1")
        a("s_nop 1")
```

```python
from common import *
import os
from k_qkv2 import *
from k_attn import attn_body
from k_moe import topk_body, moe1_body, moe2_body
SC = " sc1"
NWK = 224
FUSEPREP = int(os.environ.get("FUSEPREP", "1"))

def flag_store(a, sreg, vtmp=240):
    a("s_waitcnt vmcnt(0)")
    a("s_mov_b64 s[38:39], exec")
    a(f"v_mov_b32 v{vtmp}, s{sreg}")
    a(f"v_mov_b32 v{vtmp+1}, s{NONCE}")
    a("s_mov_b64 exec, 1")
    a(f"global_store_dword v{vtmp}, v{vtmp+1}, s[4:5] sc1")
    a("s_mov_b64 exec, s[38:39]")

NLDS = 147456
def nonce_issue(a, t=184):
    a(f"v_mov_b32 v{t}, 128")
    a(f"global_load_dword v{t+1}, v{t}, s[28:29] sc0 sc1")

def nonce_bcast(a, lab, t=184):
    a("s_cmp_lg_u32 s3, 0")
    a(f"s_cbranch_scc1 {lab}_B")
    a.label(f"{lab}_L")
    a(f"v_readfirstlane_b32 s{NONCE}, v{t+1}")
    a(f"s_cmp_lg_u32 s{NONCE}, 0")
    a(f"s_cbranch_scc1 {lab}_G")
    a("s_sleep 4")
    a(f"v_mov_b32 v{t}, 128")
    a(f"global_load_dword v{t+1}, v{t}, s[28:29] sc0 sc1")
    a("s_waitcnt vmcnt(0)")
    a(f"s_branch {lab}_L")
    a.label(f"{lab}_G")
    a(f"v_mov_b32 v{t}, {NLDS}")
    a(f"ds_write_b32 v{t}, v{t+1}")
    a("s_waitcnt lgkmcnt(0)")
    a.label(f"{lab}_B")
    a("s_barrier")
    a(f"v_mov_b32 v{t}, {NLDS}")
    a(f"ds_read_b32 v{t+1}, v{t}")
    a("s_waitcnt lgkmcnt(0)")
    a(f"v_readfirstlane_b32 s{NONCE}, v{t+1}")

def ln_issue(a, t=188):
    a("s_lshl_b32 s15, s10, 2"); a("s_add_u32 s15, s15, s3"); a("s_lshl_b32 s15, s15, 7")
    a(f"s_add_u32 s15, s15, {F_LN}")
    a(f"v_mov_b32 v{t+4}, s15")
    a(f"global_load_dwordx4 {vr(t,4)}, v{t+4}, s[4:5] sc1")

def ln_check(a, lab, t=188):
    a.label(lab)
    for i in range(4): a(f"v_xor_b32 v{t+i}, s{NONCE}, v{t+i}")
    a(f"v_or3_b32 v{t}, v{t}, v{t+1}, v{t+2}")
    a(f"v_or_b32 v{t}, v{t}, v{t+3}")
    a(f"v_cmp_ne_u32 vcc, 0, v{t}")
    a(f"s_cbranch_vccz {lab}_OK")
    a("s_sleep 2")
    a(f"global_load_dwordx4 {vr(t,4)}, v{t+4}, s[4:5] sc1")
    a("s_waitcnt vmcnt(0)")
    a(f"s_branch {lab}")
    a.label(f"{lab}_OK")

def gen_worker(a):
    a.label("WK_START")
    TL = int(os.environ.get("TL", "0"))
    def tl(i):
        if TL:
            a(f"s_memrealtime s[{80+2*i}:{81+2*i}]"); a("s_waitcnt lgkmcnt(0)")
    def tl1(i):
        if TL:
            l = a.newlabel("TL1")
            a(f"s_cmp_lg_u32 s{80+2*i}, 0"); a(f"s_cbranch_scc1 {l}")
            tl(i); a.label(l)
    a.tl1 = tl1
    if TL:
        for i in range(80, 96): a(f"s_mov_b32 s{i}, 0")
    tl(0)
    load_ptr(a, 4, "ws")
    a("v_lshrrev_b32 v1, 6, v0")
    a("v_and_b32 v2, 63, v0")
    a("s_nop 0")
    a("v_readfirstlane_b32 s3, v1")
    a("s_lshr_b32 s40, s2, 3")
    a("s_mul_i32 s40, s40, 7")
    a("s_and_b32 s41, s2, 7")
    a("s_add_u32 s40, s40, s41")
    a("s_sub_u32 s40, s40, 1")
    a("s_waitcnt lgkmcnt(0)")
    pre_loads(a)
    gen_selB(a, SELW, "v2", 144)
    load_ptr(a, 28, "dbg")
    a("s_mov_b32 s53, 2")
    a("s_mov_b32 s55, 0")
    a("s_lshr_b32 s42, s2, 3")
    a("s_and_b32 s43, s2, 7")
    a("s_sub_u32 s43, s43, 1")
    a.label("WK_GEMM")
    a("s_cmp_ge_u32 s42, 120")
    a("s_cbranch_scc1 WK_GEMM_DONE")
    a("s_cmp_ge_u32 s42, 80")
    a("s_cbranch_scc1 WK_GEMM_Q")
    a("s_mul_i32 s10, s42, 205")
    a("s_lshr_b32 s10, s10, 11")
    a("s_mul_i32 s11, s10, 10")
    a("s_sub_u32 s11, s42, s11")
    a("s_mul_i32 s11, s11, 7")
    a("s_add_u32 s11, s11, s43")
    a("s_cmp_ge_u32 s11, 64")
    a("s_cbranch_scc1 WK_GEMM_NEXT")
    a("s_add_u32 s11, s11, 32")
    a("s_branch WK_GEMM_GO")
    a.label("WK_GEMM_Q")
    a("s_sub_u32 s11, s42, 80")
    a("s_mul_i32 s10, s11, 205")
    a("s_lshr_b32 s10, s10, 10")
    a("s_mul_i32 s15, s10, 5")
    a("s_sub_u32 s11, s11, s15")
    a("s_mul_i32 s11, s11, 7")
    a("s_sub_u32 s15, 6, s43")
    a("s_add_u32 s11, s11, s15")
    a("s_cmp_ge_u32 s11, 32")
    a("s_cbranch_scc1 WK_GEMM_NEXT")
    a.label("WK_GEMM_GO")
    qkv_stage_addr(a)
    a("s_cmp_lg_u32 s53, 2")
    a("s_cbranch_scc1 WK_NOPRE")
    a("s_mov_b32 s54, s10")
    a("s_cmp_ge_u32 s40, 128")
    a("s_cbranch_scc1 WK_PRE_I")
    qkv_stage_loads(a, 0, NPRE//8)
    pre_block(a)
    a("s_cmp_lg_u32 s3, 0")
    a("s_cbranch_scc1 WK_PRE_N")
    nonce_issue(a)
    a.label("WK_PRE_N")
    qkv_stage_loads(a, NPRE//8, 4)
    a(f"s_waitcnt vmcnt({32-NPRE})")
    nonce_bcast(a, "WK_NB1")
    a("s_cmp_lg_u32 s3, 0")
    a("s_cbranch_scc1 WK_PRE_D")
    a("s_lshr_b32 s41, s40, 2"); a("s_lshl_b32 s41, s41, 7")
    a("s_and_b32 s15, s40, 3"); a("s_lshl_b32 s15, s15, 2")
    a("s_add_u32 s41, s41, s15"); a(f"s_add_u32 s41, s41, {F_LN}")
    a("v_mov_b32 v184, s41")
    a(f"v_mov_b32 v185, s{NONCE}")
    a("s_mov_b64 exec, 1")
    a("global_store_dword v184, v185, s[4:5] sc1")
    a("s_mov_b64 exec, -1")
    a("s_mov_b32 s55, 1")
    a("s_branch WK_PRE_D")
    a.label("WK_PRE_I")
    a("s_cmp_lg_u32 s3, 0")
    a("s_cbranch_scc1 WK_PRE_N2")
    nonce_issue(a)
    a.label("WK_PRE_N2")
    pre_init(a)
    a("s_waitcnt vmcnt(0)")
    nonce_bcast(a, "WK_NB2")
    a("s_cmp_lg_u32 s3, 0")
    a("s_cbranch_scc1 WK_PRE_I2")
    a("s_sub_u32 s41, s40, 128"); a("s_lshl_b32 s41, s41, 2"); a(f"s_add_u32 s41, s41, {F_INIT}")
    a("v_mov_b32 v184, s41")
    a(f"v_mov_b32 v185, s{NONCE}")
    a("s_mov_b64 exec, 1")
    a("global_store_dword v184, v185, s[4:5] sc1")
    a("s_mov_b64 exec, -1")
    a.label("WK_PRE_I2")
    qkv_stage_loads(a)
    a.label("WK_PRE_D")
    a("s_mov_b32 s10, s54")
    tl1(1)
    a("s_branch WK_STG")
    a.label("WK_NOPRE")
    ln_issue(a)
    qkv_stage_loads(a)
    a("s_barrier")
    a.label("WK_STG")
    qkv_stage(a)
    a("s_mov_b32 s55, 0")
    tl1(2)
    a("s_cmp_eq_u32 s53, 0")
    a("s_cbranch_scc1 WK_NOBAR")
    a("s_mov_b32 s53, 0")
    ln_issue(a)
    a("s_waitcnt vmcnt(0)")
    a.label("WK_NOBAR")
    ln_check(a, "WK_LNC")
    a("s_waitcnt lgkmcnt(0)")
    a("s_barrier")
    tl1(3)
    qkv_rest(a, "WKG", SC, "WK_GEMM_FL")
    a.label("WK_GEMM_FL")
    a("s_lshl_b32 s41, s14, 9")
    a("s_lshl_b32 s15, s12, 4")
    a("s_add_u32 s41, s41, s15")
    a("s_lshl_b32 s15, s13, 2")
    a("s_add_u32 s41, s41, s15")
    a(f"s_add_u32 s41, s41, {F_QKV}")
    flag_store(a, 41)
    tl1(4)
    a.label("WK_GEMM_NEXT")
    a("s_add_u32 s42, s42, 32")
    a("s_branch WK_GEMM")
    a.label("WK_GEMM_DONE")
    a(f"s_cmp_lg_u32 s40, {NWK-1}")
    a("s_cbranch_scc1 WK_NOTOPK")
    def fl_topk(a):
        a(f"s_mov_b32 s41, {F_MISC}")
        flag_store(a, 41)
    a("v_and_b32 v4, 31, v2")
    a("v_lshlrev_b32 v4, 7, v4")
    a(f"v_add_u32 v4, {F_LN}, v4")
    a.label("WK_TKB")
    a("global_load_dwordx4 v[8:11], v4, s[4:5] sc1")
    a("s_waitcnt vmcnt(0)")
    for i in range(4): a(f"v_xor_b32 v{8+i}, s{NONCE}, v{8+i}")
    a("v_or3_b32 v8, v8, v9, v10")
    a("v_or_b32 v8, v8, v11")
    a("v_cmp_ne_u32 vcc, 0, v8")
    a("s_cbranch_vccnz WK_TKB")
    a("s_barrier")
    topk_body(a, "WKT", 0, SC, fl_topk)
    a("s_barrier")
    a.label("WK_NOTOPK")
    a("s_cmp_ge_u32 s40, 112")
    a("s_cbranch_scc1 WK_NOM1")
    a(f"v_mov_b32 v3, {F_MISC}")
    a.label("WK_M1POLL")
    a("global_load_dword v4, v3, s[4:5] sc1")
    a("s_waitcnt vmcnt(0)")
    a(f"v_cmp_ne_u32 vcc, s{NONCE}, v4")
    a("s_cbranch_vccnz WK_M1POLL")
    a("s_mov_b32 s10, s40")
    def fl_m1(a):
        a("s_lshl_b32 s41, s10, 2")
        a(f"s_add_u32 s41, s41, {F_MISC+512}")
        flag_store(a, 41)
    moe1_body(a, "WK", 0, SC, fl_m1)
    a("s_barrier")
    a.label("WK_NOM1")
    a("s_cmp_lt_u32 s40, 112")
    a("s_cbranch_scc1 WK_NOM2")
    a("s_cmp_ge_u32 s40, 144")
    a("s_cbranch_scc1 WK_NOM2")
    a("v_lshlrev_b32 v3, 3, v2")
    a(f"v_add_u32 v3, {F_MISC+512}, v3")
    a.label("WK_M2POLL")
    a("global_load_dwordx2 v[4:5], v3, s[4:5] sc1")
    a("s_waitcnt vmcnt(0)")
    a(f"v_xor_b32 v4, s{NONCE}, v4")
    a(f"v_xor_b32 v5, s{NONCE}, v5")
    a("v_or_b32 v4, v4, v5")
    a("v_cmp_ne_u32 vcc, 0, v4")
    a("s_and_b32 s41, vcc_hi, 0x00ffffff")
    a("s_or_b32 s41, s41, vcc_lo")
    a("s_cbranch_scc1 WK_M2POLL")
    a("s_sub_u32 s10, s40, 112")
    def fl_m2(a):
        a("s_lshl_b32 s41, s10, 2")
        a(f"s_add_u32 s41, s41, {F_MISC+1024}")
        flag_store(a, 41)
    moe2_body(a, "WK", 0, SC, fl_m2)
    a("s_barrier")
    a.label("WK_NOM2")
    load_ptr(a, 6, "x"); load_ptr(a, 8, "out")
    a("s_mov_b64 s[44:45], s[6:7]") if False else None
    a("s_lshr_b32 s42, s40, 4")
    a("s_and_b32 s43, s40, 15")
    a("v_lshlrev_b32 v3, 4, v2")
    load_ptr(a, 20, "Wo")
    gen_selB(a, SELW, "v2", 144)
    a("v_and_b32 v4, 15, v2")
    a("v_lshlrev_b32 v4, 10, v4")
    a("v_lshrrev_b32 v5, 4, v2")
    a("v_lshlrev_b32 v5, 4, v5")
    a("v_add_u32 v4, v4, v5")
    a("v_add_u32 v5, 16384, v4")
    a("s_lshl_b32 s12, s3, 20")
    a("s_lshl_b32 s13, s43, 6")
    a("s_add_u32 s12, s12, s13")
    a("s_waitcnt lgkmcnt(0)")
    a("s_mov_b64 s[44:45], s[6:7]")
    a("s_mov_b64 s[46:47], s[8:9]")
    a("s_add_u32 s20, s20, s12"); a("s_addc_u32 s21, s21, 0")
    a("s_waitcnt vmcnt(0)")
    for half in range(2):
        for j in range(16*half, 16*half+16):
            a(f"global_load_dwordx4 {ar((j*2)*4,4)}, v4, s[20:21]")
            a(f"global_load_dwordx4 {ar((j*2+1)*4,4)}, v5, s[20:21]")
            a("s_add_u32 s20, s20, 32768"); a("s_addc_u32 s21, s21, 0")
    DT = [144, 160]
    def wfin(j):
        tr_pack(a, DT[j & 1], 176, 180)
        a("s_nop 0")
        for r in range(8):
            a(f"v_accvgpr_write_b32 a{j*8+r}, v{176+r}")
    for j in range(32):
        a(f"s_waitcnt vmcnt({2*(31-j)})")
        tr_unit(a, ar((j*2)*4,4), ar((j*2+1)*4,4), DT[j & 1], SELW)
        if j: wfin(j-1)
    a("s_nop 7")
    wfin(31)
    a.label("WK_SEG")
    a("s_cmp_ge_u32 s42, 64")
    a("s_cbranch_scc1 WK_END")
    a("s_lshl_b32 s14, s43, 1")
    a("s_lshr_b32 s15, s3, 1")
    a("s_add_u32 s14, s14, s15")
    a("s_mov_b32 s13, s42")
    a("s_lshl_b32 s12, s13, 5")
    a("s_add_u32 s12, s12, s14")
    a("s_lshl_b32 s15, s14, 9")
    a("s_lshr_b32 s16, s13, 1")
    a("s_lshl_b32 s16, s16, 4")
    a("s_add_u32 s15, s15, s16")
    a(f"s_add_u32 s15, s15, {F_QKV}")
    a("s_lshl_b32 s16, s12, 4")
    a(f"s_add_u32 s16, s16, {F_M}")
    a("v_mov_b32 v4, s15")
    a("v_mov_b32 v5, s16")
    a.label("WK_APOLL")
    a("global_load_dwordx4 v[8:11], v4, s[4:5] sc1")
    a("global_load_dwordx4 v[12:15], v5, s[4:5] sc1")
    a("s_waitcnt vmcnt(0)")
    for r in (8, 9, 10, 12, 13, 14, 15): a(f"v_xor_b32 v{r}, s{NONCE}, v{r}")
    a("v_or3_b32 v8, v8, v9, v10")
    a("v_or3_b32 v12, v12, v13, v14")
    a("v_or3_b32 v8, v8, v12, v15")
    a("v_cmp_ne_u32 vcc, 0, v8")
    a("s_cbranch_vccz WK_AGO")
    a("s_sleep 8")
    a("s_branch WK_APOLL")
    a.label("WK_AGO")
    a("s_and_b32 s15, s3, 1")
    a("s_cmp_eq_u32 s15, 1")
    a("s_cbranch_scc1 WK_AT1")
    attn_body(a, "WKA0", SC, (0,), SC)
    a("s_branch WK_ATD")
    a.label("WK_AT1")
    attn_body(a, "WKA1", SC, (1,), SC)
    a.label("WK_ATD")
    a("s_lshl_b32 s41, s12, 3")
    a("s_and_b32 s15, s3, 1")
    a("s_lshl_b32 s15, s15, 2")
    a("s_add_u32 s41, s41, s15")
    a(f"s_add_u32 s41, s41, {F_A}")
    flag_store(a, 41)
    a("s_lshl_b32 s15, s42, 8")
    a(f"s_add_u32 s15, s15, {F_A}")
    a("v_lshlrev_b32 v4, 2, v2")
    a("v_and_b32 v5, 31, v2")
    a("v_lshlrev_b32 v5, 2, v5")
    a(f"v_add_u32 v5, {F_MISC+1024}, v5")
    a("v_add_u32 v4, s15, v4")
    a.label("WK_OPOLL")
    a("global_load_dword v8, v4, s[4:5] sc1")
    a("global_load_dword v9, v5, s[4:5] sc1")
    a("s_waitcnt vmcnt(0)")
    a(f"v_xor_b32 v8, s{NONCE}, v8")
    a(f"v_xor_b32 v9, s{NONCE}, v9")
    a("v_or_b32 v8, v8, v9")
    a("v_cmp_ne_u32 vcc, 0, v8")
    a("s_cbranch_vccz WK_OGO")
    a("s_sleep 8")
    a("s_branch WK_OPOLL")
    a.label("WK_OGO")
    a("s_lshl_b32 s12, s42, 18")
    a("s_lshl_b32 s13, s3, 15")
    a("s_add_u32 s12, s12, s13")
    a(f"s_add_u32 s12, s12, {OFF_OF}")
    a("s_add_u32 s20, s4, s12"); a("s_addc_u32 s21, s5, 0")
    a("v_add_u32 v4, 131072, v3")
    a("v_and_b32 v5, 15, v2")
    a("v_lshlrev_b32 v5, 10, v5")
    a("v_lshrrev_b32 v6, 4, v2")
    a("v_lshlrev_b32 v6, 3, v6")
    a("v_add_u32 v5, v5, v6")
    a("s_lshl_b32 s12, s42, 15")
    a("s_lshr_b32 s13, s3, 1")
    a("s_lshl_b32 s13, s13, 14")
    a("s_add_u32 s12, s12, s13")
    a("s_lshl_b32 s13, s43, 6")
    a("s_add_u32 s12, s12, s13")
    a("s_and_b32 s13, s3, 1")
    a("s_lshl_b32 s13, s13, 5")
    a("s_add_u32 s12, s12, s13")
    a("v_add_u32 v5, s12, v5")
    a("global_load_dwordx2 v[24:25], v5, s[44:45]")
    a("global_load_dwordx2 v[26:27], v5, s[4:5] sc1")
    ACC = 8
    NB = 24; BUF = 32
    def loads(j):
        b = BUF + (j % NB)*8
        a(f"global_load_dwordx4 {vr(b,4)}, v3, s[20:21] offset:{(j&3)*1024} sc1")
        a(f"global_load_dwordx4 {vr(b+4,4)}, v4, s[20:21] offset:{(j&3)*1024} sc1")
        if (j & 3) == 3:
            a("s_add_u32 s20, s20, 4096"); a("s_addc_u32 s21, s21, 0")
    for j in range(NB): loads(j)
    issued = NB
    for j in range(32):
        a(f"s_waitcnt vmcnt({2*(issued-1-j)})")
        b = BUF + (j % NB)*8
        for tt in range(2):
            for nt in range(2):
                acc = vr(ACC+(tt*2+nt)*4, 4)
                c = "0" if j == 0 else acc
                a(f"v_mfma_f32_16x16x32_bf16 {acc}, {ar((j*2+nt)*4,4)}, {vr(b+4*tt,4)}, {c}")
        if issued < 32:
            loads(issued); issued += 1
    a("s_nop 7")
    a("s_lshl_b32 s12, s3, 12")
    a("v_add_u32 v6, s12, v3")
    for i in range(4):
        a(f"ds_write_b128 v6, {vr(ACC+4*i,4)} offset:{i*1024}")
    a("s_waitcnt lgkmcnt(0)")
    a("s_barrier")
    a("s_lshl_b32 s12, s3, 10")
    a("v_add_u32 v6, s12, v3")
    for w in range(4):
        a(f"ds_read_b128 {vr(32+4*w,4)}, v6 offset:{w*4096}")
    a("s_waitcnt lgkmcnt(0)")
    a("s_barrier")
    for r in range(4):
        a(f"v_add_f32 v{32+r}, v{32+r}, v{36+r}")
        a(f"v_add_f32 v{40+r}, v{40+r}, v{44+r}")
        a(f"v_add_f32 v{32+r}, v{32+r}, v{40+r}")
    a("v_cvt_pk_bf16_f32 v16, v32, v33")
    a("v_cvt_pk_bf16_f32 v17, v34, v35")
    def unpack(dst, s0, s1):
        a(f"v_lshlrev_b32 v{dst}, 16, v{s0}")
        a(f"v_and_b32 v{dst+1}, 0xffff0000, v{s0}")
        a(f"v_lshlrev_b32 v{dst+2}, 16, v{s1}")
        a(f"v_and_b32 v{dst+3}, 0xffff0000, v{s1}")
    unpack(20, 16, 17)
    unpack(36, 24, 25)
    for r in range(4): a(f"v_add_f32 v{20+r}, v{20+r}, v{36+r}")
    a("v_cvt_pk_bf16_f32 v16, v20, v21")
    a("v_cvt_pk_bf16_f32 v17, v22, v23")
    unpack(20, 16, 17)
    unpack(36, 26, 27)
    for r in range(4): a(f"v_add_f32 v{20+r}, v{20+r}, v{36+r}")
    a("v_cvt_pk_bf16_f32 v16, v20, v21")
    a("v_cvt_pk_bf16_f32 v17, v22, v23")
    a("global_store_dwordx2 v5, v[16:17], s[46:47]")
    a("s_add_u32 s42, s42, 14")
    a("s_branch WK_SEG")
    a.label("WK_END")
    if TL:
        tl(7)
        a("s_lshl_b32 s25, s40, 2"); a("s_add_u32 s25, s25, s3"); a("s_lshl_b32 s25, s25, 5")
        a(f"s_add_u32 s25, s25, {4*MB+131072+8192}")
        a("v_mov_b32 v16, s25")
        for i in range(8):
            a(f"v_mov_b32 v17, s{80+2*i}")
            a(f"global_store_dword v16, v17, s[4:5] offset:{4*i}")
```

```python
import sys
from common import *
from k_prep import gen_prep
from k_chain import gen_chain, CHAIN_LDS
from k_work import FUSEPREP
a = Asm()
if not FUSEPREP: gen_prep(a)
gen_chain(a, fused=True)
launches = ([] if FUSEPREP else [("prep_kernel", 865, 256, 0)]) + [("main_kernel", 256, 256, CHAIN_LDS)]
out = sys.argv[1] if len(sys.argv) > 1 else f"cdna_kernels/{NAME}.s"
open(out, "w").write(a.text(launches))
print("wrote", out, len(a.lines), "lines")
```

```python
NAME = "parallel_sum__memory_aug_recurrent_mem_tr__moe_arch_mod__prompt"
MB = 1 << 20
KA = dict(x=0, mem0=8, Wq=16, Wk=24, Wv=32, Wo=40, seg=48, Bx=56, wr=64, wg=72, wu=80, wd=88, out=96, dbg=104, ws=112)
OFF_XN  = 0
OFF_XNF = 2*MB
OFF_R   = 4*MB
OFF_MOE = 4*MB + 65536
OFF_FLG = 4*MB + 262144
F_QKV = OFF_FLG
F_M   = OFF_FLG + 16384
F_A   = OFF_FLG + 49152
F_MISC= OFF_FLG + 65536
F_LN  = OFF_FLG + 69632
F_INIT = OFF_FLG + 73728
FLG_BYTES = 65536 + 12288
NONCE = 56
CNONCE = 46
OFF_MEM = 5*MB
OFF_P   = 6*MB
NRING = 4
OFF_WQF = 8*MB
OFF_WKF = 12*MB
OFF_WVF = 16*MB
OFF_WOF = 20*MB
OFF_QF  = 32*MB
OFF_KF  = 48*MB
OFF_VF  = 64*MB
OFF_KMF = 80*MB
OFF_VMF = 88*MB
OFF_OF  = 96*MB

class Asm:
    def __init__(self):
        self.lines = []
        self.kernels = []
        self.uid = 0
    def __call__(self, s):
        for l in s.strip("\n").split("\n"):
            self.lines.append("    " + l.strip())
    def label(self, l):
        self.lines.append(l + ":")
    def newlabel(self, p="L"):
        self.uid += 1
        return f"{p}_{self.uid}"
    def begin(self, name):
        self.lines += [f".globl {name}", ".p2align 8", f".type {name},@function", f"{name}:"]
    def end(self, name, vgpr, accum, sgpr=102):
        self("s_endpgm")
        self.kernels.append((name, vgpr, accum, sgpr))
    def text(self, launches):
        hdr = []
        for (k, g, b, lds) in launches:
            hdr.append(f"; @launch kernel={k} grid=({g},1,1) block=({b},1,1) lds={lds}")
        out = hdr + ['.amdgcn_target "amdgcn-amd-amdhsa--gfx950"', ".text"] + self.lines
        out.append('.section .rodata,"a"')
        for (name, vgpr, accum, sgpr) in self.kernels:
            out += [".p2align 6", f".amdhsa_kernel {name}",
                    f"  .amdhsa_next_free_vgpr {vgpr}", f"  .amdhsa_next_free_sgpr {sgpr}",
                    f"  .amdhsa_accum_offset {accum}", "  .amdhsa_group_segment_fixed_size 0",
                    "  .amdhsa_kernarg_size 120", "  .amdhsa_user_sgpr_count 2",
                    "  .amdhsa_user_sgpr_kernarg_segment_ptr 1", "  .amdhsa_system_sgpr_workgroup_id_x 1",
                    ".end_amdhsa_kernel"]
        return "\n".join(out) + "\n"

def vr(b, n=1):
    return f"v{b}" if n == 1 else f"v[{b}:{b+n-1}]"
def ar(b, n=1):
    return f"a{b}" if n == 1 else f"a[{b}:{b+n-1}]"
def sr(b, n=1):
    return f"s{b}" if n == 1 else f"s[{b}:{b+n-1}]"

def load_ptr(a, sreg, which):
    a(f"s_load_dwordx2 {sr(sreg,2)}, s[0:1], {KA[which]}")

def add64_imm(a, sd, ss, imm):
    a(f"s_add_u32 s{sd}, s{ss}, {imm}")
    a(f"s_addc_u32 s{sd+1}, s{ss+1}, 0")

def wave_reduce(a, v, t, op="add", skip_low=0):
    ins = {"add": "v_add_f32", "max": "v_max_f32", "maxu": "v_max_u32"}[op]
    for ctl in ["quad_perm:[1,0,3,2]", "quad_perm:[2,3,0,1]", "row_half_mirror", "row_mirror"]:
        a("s_nop 1")
        a(f"{ins}_dpp v{v}, v{v}, v{v} {ctl} row_mask:0xf bank_mask:0xf")
    xor_reduce_16_32(a, v, t, op)

def xor_reduce_16_32(a, v, t, op="add"):
    ins = {"add": "v_add_f32", "max": "v_max_f32", "maxu": "v_max_u32"}[op]
    for sw in ["v_permlane16_swap_b32", "v_permlane32_swap_b32"]:
        a(f"v_mov_b32 v{t}, v{v}")
        a("s_nop 1")
        a(f"{sw} v{v}, v{t}")
        a("s_nop 1")
        a(f"{ins} v{v}, v{v}, v{t}")

def round_bf16(a, v, n=1):
    a(f"v_cvt_pk_bf16_f32 v{v}, v{v}, v{v}")
    a(f"v_lshlrev_b32 v{v}, 16, v{v}")

class VmSB:
    def __init__(self, a):
        self.a = a; self.q = []
    def issue(self, text, tag=None):
        self.a(text); self.q.append(tag)
    def n(self): return len(self.q)
    def wait(self, *tags):
        last = -1
        for i, t in enumerate(self.q):
            if t in tags: last = i
        if last < 0: return
        n = len(self.q) - 1 - last
        assert n <= 63, n
        self.a(f"s_waitcnt vmcnt({n})")
        self.q = self.q[last+1:]

def gen_selB(a, base, lane="v2", t0=None):
    a(f"v_and_b32 v{t0}, 1, {lane}")
    a(f"v_lshlrev_b32 v{t0}, 4, v{t0}")
    a(f"v_mov_b32 v{t0+1}, 0x3f80")
    a(f"v_lshlrev_b32 v{t0}, v{t0}, v{t0+1}")
    a(f"v_lshrrev_b32 v{t0+1}, 4, {lane}")
    a(f"v_bfe_u32 v{t0+2}, {lane}, 3, 1")
    a(f"v_sub_u32 v{t0+1}, v{t0+1}, v{t0+2}")
    a(f"v_lshlrev_b32 v{t0+1}, 2, v{t0+1}")
    a(f"v_bfe_u32 v{t0+2}, {lane}, 1, 2")
    a(f"v_add_u32 v{t0+1}, v{t0+1}, v{t0+2}")
    for t in range(2):
        for rho in range(4):
            a(f"v_cmp_eq_u32 vcc, {8*t+rho}, v{t0+1}")
            a("s_nop 1")
            a(f"v_cndmask_b32 v{base+4*t+rho}, 0, v{t0}, vcc")

def tr_unit(a, A0, A1, D, SEL):
    a(f"v_mfma_f32_16x16x32_bf16 {vr(D,4)}, {A0}, {vr(SEL,4)}, 0")
    a(f"v_mfma_f32_16x16x32_bf16 {vr(D+4,4)}, {A0}, {vr(SEL+4,4)}, 0")
    a(f"v_mfma_f32_16x16x32_bf16 {vr(D+8,4)}, {A1}, {vr(SEL,4)}, 0")
    a(f"v_mfma_f32_16x16x32_bf16 {vr(D+12,4)}, {A1}, {vr(SEL+4,4)}, 0")

def tr_pack(a, D, o0, o1):
    for t, o in ((0, o0), (1, o1)):
        a(f"v_cvt_pk_bf16_f32 v{o}, v{D+4*t}, v{D+4*t+1}")
        a(f"v_cvt_pk_bf16_f32 v{o+1}, v{D+4*t+2}, v{D+4*t+3}")
        a(f"v_cvt_pk_bf16_f32 v{o+2}, v{D+8+4*t}, v{D+8+4*t+1}")
        a(f"v_cvt_pk_bf16_f32 v{o+3}, v{D+8+4*t+2}, v{D+8+4*t+3}")

import os
HS_LAYOUT = int(os.environ.get("HS", "1"))
KV_HSH = 19 if HS_LAYOUT else 13
KV_SST = 8192 if HS_LAYOUT else 262144
KM_HSH = 18 if HS_LAYOUT else 12
KM_SST = 4096 if HS_LAYOUT else 131072
```

```python
from common import *
SCALE = 0x3db504f3
LOG2E = 0x3fb8aa3b

def attn_body(a, pre, sc_km="", qts=(0,1), sc=""):
    Q, K, KM, V, VM = 8, 40, 72, 88, 120
    S = 152
    O = 8
    if HS_LAYOUT:
        a("s_lshl_b32 s16, s14, 6"); a("s_add_u32 s28, s16, s13"); a("s_lshl_b32 s16, s28, 13")
    else:
        a("s_lshl_b32 s16, s12, 13")
    a(f"s_add_u32 s17, s16, {OFF_QF}")
    a("s_add_u32 s18, s4, s17"); a("s_addc_u32 s19, s5, 0")
    a(f"s_add_u32 s17, s16, {OFF_KF}")
    a("s_add_u32 s20, s4, s17"); a("s_addc_u32 s21, s5, 0")
    a(f"s_add_u32 s17, s16, {OFF_VF}")
    a("s_add_u32 s22, s4, s17"); a("s_addc_u32 s23, s5, 0")
    a("s_lshl_b32 s16, %s, 12" % ("s28" if HS_LAYOUT else "s12"))
    a(f"s_add_u32 s17, s16, {OFF_KMF}")
    a("s_add_u32 s24, s4, s17"); a("s_addc_u32 s25, s5, 0")
    a(f"s_add_u32 s17, s16, {OFF_VMF}")
    a("s_add_u32 s26, s4, s17"); a("s_addc_u32 s27, s5, 0")
    a("v_add_u32 v4, 4096, v3")
    a("v_lshrrev_b32 v5, 1, v3")
    nqk = 0
    for i in range(8):
        if (i & 1) not in qts: continue
        a(f"global_load_dwordx4 {vr(Q+4*i,4)}, v{3 if i<4 else 4}, s[18:19] offset:{(i&3)*1024}{sc}")
    for i in range(8):
        if (i & 1) == 1 and 1 not in qts: continue
        a(f"global_load_dwordx4 {vr(K+4*i,4)}, v{3 if i<4 else 4}, s[20:21] offset:{(i&3)*1024}{sc}")
    for i in range(4):
        a(f"global_load_dwordx4 {vr(KM+4*i,4)}, v3, s[24:25] offset:{i*1024}{sc_km}")
    for i in range(8):
        a(f"global_load_dwordx4 {vr(V+4*i,4)}, v{3 if i<4 else 4}, s[22:23] offset:{(i&3)*1024}{sc}")
    for i in range(16):
        a(f"v_mov_b64 {vr(VM+2*i,2)}, 0")
    a("s_mov_b32 exec_hi, 0")
    for i in range(8):
        a(f"global_load_dwordx2 {vr(VM+4*i,2)}, v5, s[26:27] offset:{i*512}{sc_km}")
    a("s_mov_b32 exec_hi, -1")
    a("v_lshrrev_b32 v6, 4, v2")
    a("v_lshlrev_b32 v6, 2, v6")
    a("v_and_b32 v7, 15, v2")
    for r in range(4):
        a(f"v_add_u32 v1, {r}, v6")
        a(f"v_cmp_le_u32 s[{28+2*r}:{29+2*r}], v1, v7")
    a("s_mov_b32 s36, -1"); a("s_mov_b32 s37, 0")
    a("s_waitcnt vmcnt(16)")
    for qt in qts:
        for kt in range(3):
            if qt == 0 and kt == 2: continue
            for w in range(4):
                A = KM+4*w if kt == 0 else K + 4*(2*w + kt-1)
                acc = vr(S+(qt*3+kt)*4, 4)
                c = "0" if w == 0 else acc
                a(f"v_mfma_f32_16x16x32_bf16 {acc}, {vr(A,4)}, {vr(Q+4*(2*w+qt),4)}, {c}")
    a("s_nop 7")
    a("v_mov_b32 v200, 0xff800000")
    a(f"v_mov_b32 v201, 0x{LOG2E:08x}")
    PX = 176
    for qt in qts:
        kts = (0, 1) if qt == 0 else (0, 1, 2)
        regs = []
        for kt in kts:
            b = S + (qt*3+kt)*4
            for rr in range(2):
                a(f"v_cvt_pk_bf16_f32 v202, v{b}, v{b+1}")
                a(f"v_cvt_pk_bf16_f32 v203, v{b+2}, v{b+3}")
                a(f"v_lshlrev_b32 v{b}, 16, v202")
                a(f"v_and_b32 v{b+1}, 0xffff0000, v202")
                a(f"v_lshlrev_b32 v{b+2}, 16, v203")
                a(f"v_and_b32 v{b+3}, 0xffff0000, v203")
                if rr == 0:
                    for r in range(4): a(f"v_mul_f32 v{b+r}, 0x{SCALE:08x}, v{b+r}")
            for r in range(4):
                if kt == 0:
                    a(f"v_cndmask_b32 v{b+r}, v200, v{b+r}, s[36:37]")
                elif kt - 1 == qt:
                    a(f"v_cndmask_b32 v{b+r}, v200, v{b+r}, s[{28+2*r}:{29+2*r}]")
                regs.append(b+r)
        a(f"v_max_f32 v204, v{regs[0]}, v{regs[1]}")
        for i in range(2, len(regs), 2):
            a(f"v_max3_f32 v204, v204, v{regs[i]}, v{regs[i+1]}")
        xor_reduce_16_32(a, 204, 205, "max")
        for r in regs:
            a(f"v_sub_f32 v{r}, v{r}, v204")
            a(f"v_mul_f32 v{r}, v201, v{r}")
            a(f"v_exp_f32 v{r}, v{r}")
        a("s_nop 0")
        a(f"v_add_f32 v204, v{regs[0]}, v{regs[1]}")
        for r in regs[2:]:
            a(f"v_add_f32 v204, v204, v{r}")
        xor_reduce_16_32(a, 204, 205, "add")
        a("v_rcp_f32 v204, v204")
        a("s_nop 0")
        for r in regs:
            a(f"v_mul_f32 v{r}, v{r}, v204")
        px = PX + 8*qt; pm = px + 4
        b0 = S + (qt*3)*4
        a(f"v_cvt_pk_bf16_f32 v{pm}, v{b0}, v{b0+1}")
        a(f"v_cvt_pk_bf16_f32 v{pm+1}, v{b0+2}, v{b0+3}")
        a(f"v_mov_b32 v{pm+2}, 0"); a(f"v_mov_b32 v{pm+3}, 0")
        a(f"v_cvt_pk_bf16_f32 v{px}, v{b0+4}, v{b0+5}")
        a(f"v_cvt_pk_bf16_f32 v{px+1}, v{b0+6}, v{b0+7}")
        if qt == 1:
            a(f"v_cvt_pk_bf16_f32 v{px+2}, v{b0+8}, v{b0+9}")
            a(f"v_cvt_pk_bf16_f32 v{px+3}, v{b0+10}, v{b0+11}")
        else:
            a(f"v_mov_b32 v{px+2}, 0"); a(f"v_mov_b32 v{px+3}, 0")
    a("s_waitcnt vmcnt(0)")
    a("s_nop 1")
    for qt in qts:
        px = PX + 8*qt; pm = px + 4
        for et in range(8):
            acc = vr(O+(qt*8+et)*4, 4)
            a(f"v_mfma_f32_16x16x32_bf16 {acc}, {vr(V+4*et,4)}, {vr(px,4)}, 0")
        for et in range(8):
            acc = vr(O+(qt*8+et)*4, 4)
            a(f"v_mfma_f32_16x16x32_bf16 {acc}, {vr(VM+4*et,4)}, {vr(pm,4)}, {acc}")
    a("s_nop 7")
    a("s_lshl_b32 s16, s13, 18")
    a("s_lshl_b32 s17, s14, 12")
    a("s_add_u32 s16, s16, s17")
    a(f"s_add_u32 s16, s16, {OFF_OF}")
    a("s_add_u32 s18, s4, s16"); a("s_addc_u32 s19, s5, 0")
    for qt in qts:
        a(f"v_add_u32 v4, {qt*131072}, v3")
        for w in range(4):
            t0 = O + (qt*8+2*w)*4; t1 = t0+4
            d = 184 + w*4
            a(f"v_cvt_pk_bf16_f32 v{d}, v{t0}, v{t0+1}")
            a(f"v_cvt_pk_bf16_f32 v{d+1}, v{t0+2}, v{t0+3}")
            a(f"v_cvt_pk_bf16_f32 v{d+2}, v{t1}, v{t1+1}")
            a(f"v_cvt_pk_bf16_f32 v{d+3}, v{t1+2}, v{t1+3}")
            a(f"global_store_dwordx4 v4, {vr(d,4)}, s[18:19] offset:{w*1024}{sc}")
        a("s_nop 1")

def gen_attn(a):
    name = "attn_kernel"
    a.begin(name)
    a("s_cmp_ge_u32 s2, 512")
    a("s_cbranch_scc1 ATT_END")
    load_ptr(a, 4, "ws")
    a("v_lshrrev_b32 v1, 6, v0")
    a("v_and_b32 v2, 63, v0")
    a("s_nop 0")
    a("v_readfirstlane_b32 s3, v1")
    a("s_lshl_b32 s12, s2, 2")
    a("s_add_u32 s12, s12, s3")
    a("s_lshr_b32 s13, s12, 5")
    a("s_and_b32 s14, s12, 31")
    a("v_lshlrev_b32 v3, 4, v2")
    a("s_waitcnt lgkmcnt(0)")
    attn_body(a, "ATT")
    a.label("ATT_END")
    a.end(name, 208, 208)
```

```python
from common import *
from sched import LdsSB
import os
LDS_MEMS = 0
LDS_VL = 8192
LDS_WO = 16384
LDS_SC = LDS_WO + 131072
LDS_PB = LDS_SC + 9216
LDS_OX = LDS_PB + 2048
CHAIN_LDS = LDS_OX + 4096

SCALE = 0x3db504f3
LOG2E = 0x3fb8aa3b
KX, VX = 96, 104
PROF = int(os.environ.get("PROF", "0"))
DBGMEM = int(os.environ.get("DBGMEM", "0"))
TL = int(os.environ.get("TL", "0"))
def tl(a, i):
    if TL:
        a(f"s_memrealtime s[{80+2*i}:{81+2*i}]")
        a("s_waitcnt lgkmcnt(0)")

OFF_MEMH = OFF_MEM + 65536
WARM = 1
VEARLY = int(os.environ.get("VEARLY", "1"))
E_NONCE = int(os.environ.get("E_NONCE", "24")); E_CHK = int(os.environ.get("E_CHK", "56")); E_EVAL = int(os.environ.get("E_EVAL", "61"))

def stamp(a, i):
    if not PROF: return
    a("s_memrealtime s[40:41]" if PROF == 2 else "s_memtime s[40:41]")
    a("s_waitcnt lgkmcnt(0)")
    a("s_sub_u32 s43, s40, s42")
    a(f"s_add_u32 s{50+i}, s{50+i}, s43")
    a("s_mov_b32 s42, s40")
    if PROF == 2:
        a("s_cmp_eq_u32 s7, 30")
        a(f"s_cselect_b32 s{60+i}, s40, s{60+i}")

FUSED = False
def kvflag_poll(a, lab, t=112):
    a(f"v_and_b32 v{t}, 15, v2")
    a(f"v_lshlrev_b32 v{t}, 2, v{t}")
    a(f"v_add_u32 v{t}, s34, v{t}")
    a.label(lab)
    a(f"global_load_dword v{t+1}, v{t}, s[4:5] sc1")
    a("s_waitcnt vmcnt(0)")
    a(f"v_cmp_ne_u32 vcc, s{CNONCE}, v{t+1}")
    a("s_and_b32 s25, vcc_lo, 0x6666")
    a(f"s_cbranch_scc1 {lab}")
    a("s_add_u32 s34, s34, 64")
def mflag_store(a, t=112):
    a(f"v_mov_b32 v{t}, s35")
    a(f"v_mov_b32 v{t+1}, s{CNONCE}")
    a("s_mov_b64 exec, 1")
    a(f"global_store_dword v{t}, v{t+1}, s[4:5] sc1")
    a("s_mov_b64 exec, -1")
    a("s_add_u32 s35, s35, 512")

def gen_chain(a, fused=False):
    global FUSED
    FUSED = fused
    name = "main_kernel" if fused else "chain_kernel"
    a.begin(name)
    a("s_cmp_ge_u32 s2, 256")
    a("s_cbranch_scc1 CH_END")
    a("s_and_b32 s3, s2, 7")
    a("s_cmp_lg_u32 s3, 0")
    a("s_cbranch_scc1 " + ("WK_START" if fused else "CH_END"))
    a("s_lshr_b32 s6, s2, 3")
    tl(a, 0)
    load_ptr(a, 4, "ws")
    load_ptr(a, 8, "mem0")
    load_ptr(a, 28, "dbg")
    a("v_lshrrev_b32 v1, 6, v0")
    a("v_and_b32 v2, 63, v0")
    a("s_nop 0")
    a("v_readfirstlane_b32 s3, v1")
    a("v_lshlrev_b32 v3, 4, v2")
    a("s_getreg_b32 s24, hwreg(HW_REG_XCC_ID)")
    a("s_and_b32 s24, s24, 15")
    a("s_add_u32 s24, s24, 1")
    a("s_memrealtime s[30:31]")
    a("s_waitcnt lgkmcnt(0)")
    V = VmSB(a)
    a(f"s_or_b32 s{CNONCE}, s30, 1")
    a("s_lshl_b32 s25, s6, 2"); a("s_add_u32 s25, s25, s3")
    a("s_lshl_b32 s26, s25, 2"); a(f"s_add_u32 s26, s26, {4*MB+196608}")
    a("s_add_u32 s30, s4, s26"); a("s_addc_u32 s31, s5, 0")
    a("s_add_u32 s36, s28, 128"); a("s_addc_u32 s37, s29, 0")
    a("s_cmp_eq_u32 s25, 0")
    a("s_cselect_b32 s30, s36, s30"); a("s_cselect_b32 s31, s37, s31")
    a("v_mov_b32 v4, 0")
    a(f"v_mov_b32 v5, s{CNONCE}")
    a("s_mov_b64 exec, 1")
    V.issue("global_store_dword v4, v5, s[30:31] sc0 sc1", "st")
    a("s_mov_b64 exec, -1")
    a("s_mov_b32 s49, s25")
    a("v_mov_b32 v4, s49"); a("v_mov_b32 v5, s24")
    a("s_mov_b64 exec, 1")
    V.issue("global_store_byte v4, v5, s[28:29] sc0 sc1", "st")
    a("s_mov_b64 exec, -1")
    for i, nm in enumerate(("Wq", "Wk", "Wv", "Wo")):
        load_ptr(a, 12+2*i, nm)
    SEL = 8
    gen_selB(a, SEL, "v2", 16)
    a("v_bfe_u32 v16, v2, 2, 2")
    a("v_lshlrev_b32 v16, 3, v16")
    a("v_and_b32 v17, 3, v2")
    a("v_add_u32 v16, v16, v17")
    a("v_lshlrev_b32 v16, 13, v16")
    a("v_lshrrev_b32 v17, 4, v2")
    a("v_lshlrev_b32 v17, 4, v17")
    a("v_add_u32 v4, v16, v17")
    a("v_add_u32 v5, 32768, v4")
    a("v_and_b32 v16, 15, v2")
    a("v_lshlrev_b32 v16, 10, v16")
    a("v_add_u32 v6, v16, v17")
    a("v_add_u32 v7, 16384, v6")
    a("s_waitcnt lgkmcnt(0)")
    a("s_lshl_b32 s25, s6, 8"); a("s_lshl_b32 s26, s3, 6"); a("s_add_u32 s25, s25, s26")
    for i in range(3):
        a(f"s_add_u32 s{12+2*i}, s{12+2*i}, s25"); a(f"s_addc_u32 s{13+2*i}, s{13+2*i}, 0")
    a("s_lshl_b32 s25, s6, 17"); a("s_lshl_b32 s26, s3, 15"); a("s_add_u32 s25, s25, s26")
    a("s_add_u32 s18, s18, s25"); a("s_addc_u32 s19, s19, 0")
    a("v_add_u32 v1, s26, v3")
    a(f"v_add_u32 v1, {LDS_WO}, v1")
    a("s_lshl_b32 s26, s3, 11"); a(f"s_add_u32 s26, s26, {LDS_VL}"); a("s_mov_b32 m0, s26")
    DT = [96, 112]
    def fidx(kk, t): return (((kk>>1)*2+t)*2+(kk&1))*4
    def wreg(m, kk, t):
        i = fidx(kk, t)
        return ar(i,4) if m == 0 else (ar(128+i,4) if m == 1 else vr(128+i,4))
    items = []
    def ld_wo(cp):
        b = 16 + (cp & 7)*8
        V.issue(f"global_load_dwordx4 {vr(b,4)}, v6, s[18:19] offset:{cp*64}", ("o", cp))
        V.issue(f"global_load_dwordx4 {vr(b+4,4)}, v7, s[18:19] offset:{cp*64}", ("o", cp))
    def ld_w(m, kk):
        V.issue(f"global_load_dwordx4 {wreg(m,kk,0)}, v4, s[{12+2*m}:{13+2*m}]", (m, kk))
        V.issue(f"global_load_dwordx4 {wreg(m,kk,1)}, v5, s[{12+2*m}:{13+2*m}]", (m, kk))
        a(f"s_add_u32 s{12+2*m}, s{12+2*m}, 262144"); a(f"s_addc_u32 s{13+2*m}, s{13+2*m}, 0")
    wq = [(m, kk) for m in range(3) for kk in range(16)]
    wpos = [0]
    def fill(limit=60):
        while wpos[0] < len(wq) and V.n() + 2 <= limit:
            ld_w(*wq[wpos[0]]); wpos[0] += 1
    for cp in range(8): ld_wo(cp)
    fill()
    units = [("o", cp) for cp in range(16)] + wq
    pend = None
    def finish(u, D):
        if u[0] == "o":
            cp = u[1]
            tr_pack(a, D, 80, 84)
            a(f"ds_write_b128 v1, v[80:83] offset:{(2*cp)*1024}")
            a(f"ds_write_b128 v1, v[84:87] offset:{(2*cp+1)*1024}")
        else:
            m, kk = u
            if m == 2:
                tr_pack(a, D, 128+fidx(kk,0), 128+fidx(kk,1))
            else:
                tr_pack(a, D, 88, 92)
                a("s_nop 0")
                for t in range(2):
                    for r in range(4):
                        a(f"v_accvgpr_write_b32 a{128*m+fidx(kk,t)+r}, v{88+4*t+r}")
    a("s_lshl_b32 s25, s6, %d" % KV_HSH); a("s_lshl_b32 s26, s3, 11"); a("s_add_u32 s25, s25, s26")
    a(f"s_add_u32 s26, s25, {OFF_KF}")
    a("s_add_u32 s72, s4, s26"); a("s_addc_u32 s73, s5, 0")
    a(f"s_add_u32 s26, s25, {OFF_VF}")
    a("s_add_u32 s74, s4, s26"); a("s_addc_u32 s75, s5, 0")
    a("s_lshl_b32 s34, s6, 9")
    a(f"s_add_u32 s34, s34, {F_QKV}")
    U_NONCE, U_CHK, U_EVAL = E_NONCE, E_CHK, E_EVAL
    def dts(i): return DT[i & 1] if i < 18 else DT[i & 1] - 64
    for i, u in enumerate(units):
        V.wait(u)
        D = dts(i)
        if u[0] == "o":
            b = 16 + (u[1] & 7)*8
            tr_unit(a, vr(b,4), vr(b+4,4), D, SEL)
        else:
            tr_unit(a, wreg(u[0],u[1],0), wreg(u[0],u[1],1), D, SEL)
        if pend is not None: finish(pend, dts(i-1))
        if u[0] == "o" and u[1] < 8: ld_wo(u[1] + 8)
        if i == U_NONCE:
            a("v_mov_b32 v64, 128")
            V.issue("global_load_dword v65, v64, s[28:29] sc0 sc1", "nonce")
        if i == U_CHK:
            V.wait("nonce")
            a(f"v_readfirstlane_b32 s{CNONCE}, v65")
            a("v_and_b32 v64, 31, v2"); a("v_lshlrev_b32 v64, 2, v64")
            V.issue("global_load_dword v66, v64, s[28:29] sc0 sc1", "chk")
            a("v_and_b32 v67, 15, v2"); a("v_lshlrev_b32 v67, 2, v67"); a("v_add_u32 v67, s34, v67")
            V.issue("global_load_dword v68, v67, s[4:5] sc1", "chk")
            a("v_min_u32 v67, 47, v2"); a("v_lshlrev_b32 v67, 3, v67"); a(f"v_add_u32 v67, {F_INIT}, v67")
            V.issue("global_load_dwordx2 v[70:71], v67, s[4:5] sc1", "chk")
        if i == U_EVAL:
            V.wait("chk")
            a("s_mul_i32 s25, s24, 0x01010101")
            a("v_cmp_ne_u32 vcc, s25, v66")
            a("s_or_b32 s47, vcc_lo, vcc_hi")
            a(f"v_cmp_ne_u32 vcc, s{CNONCE}, v68")
            a("s_and_b32 s25, vcc_lo, 0x6666")
            a("s_or_b32 s47, s47, s25")
            a(f"v_xor_b32 v70, s{CNONCE}, v70"); a(f"v_xor_b32 v71, s{CNONCE}, v71"); a("v_or_b32 v70, v70, v71")
            a("v_cmp_ne_u32 vcc, 0, v70")
            a("s_or_b32 s47, s47, vcc_lo"); a("s_or_b32 s47, s47, vcc_hi")
            a(f"s_cmp_eq_u32 s{CNONCE}, 0")
            a("s_cselect_b32 s47, 1, s47")
            V.issue(f"global_load_dwordx4 {vr(KX,4)}, v3, s[72:73] sc1", "kv")
            V.issue(f"global_load_dwordx4 {vr(KX+4,4)}, v3, s[72:73] offset:1024 sc1", "kv")
            V.issue(f"global_load_lds_dwordx4 v3, s[74:75] sc1", "kv")
            V.issue(f"global_load_lds_dwordx4 v3, s[74:75] offset:1024 sc1", "kv")
        fill()
        pend = u
    a("s_nop 7")
    finish(pend, dts(len(units)-1))
    tl(a, 1)
    a("s_mov_b32 s20, 0x00ff00ff"); a("s_mov_b32 s21, 0x00ff00ff")
    a("s_mov_b32 s22, 0x0ffc0ffc"); a("s_mov_b32 s23, 0x0ffc0ffc")
    a("s_mov_b32 s32, 0x0ffc0ffc"); a("s_mov_b32 s33, 0")
    a("s_mov_b32 s44, 0xff00ff00"); a("s_mov_b32 s45, 0xff00ff00")
    a("s_lshl_b32 s25, s3, 11")
    a("v_add_u32 v4, s25, v3")
    a(f"s_add_u32 s25, s25, {LDS_MEMS}")
    a("v_add_u32 v5, s25, v3")
    a(f"v_add_u32 v6, {LDS_MEMS}, v3")
    a("v_lshrrev_b32 v7, 4, v2")
    a("v_mul_u32_u24 v7, 144, v7")
    a("v_and_b32 v8, 15, v2")
    a("v_lshlrev_b32 v8, 4, v8")
    a("v_add_u32 v7, v7, v8")
    a("s_mul_i32 s25, s3, 2304")
    a(f"s_add_u32 s25, s25, {LDS_SC}")
    a("v_add_u32 v7, s25, v7")
    a("v_bfe_u32 v16, v2, 2, 2")
    a("v_and_b32 v17, 3, v2")
    a("v_bfe_u32 v18, v2, 4, 1")
    a("s_lshl_b32 s25, s3, 1")
    a("v_add_u32 v18, s25, v18")
    a("v_cmp_eq_u32 vcc, 3, v16")
    a("s_nop 1")
    a("v_cndmask_b32 v19, v16, 0, vcc")
    a("v_mul_u32_u24 v19, 576, v19")
    a("v_mul_u32_u24 v20, 144, v17")
    a("v_add_u32 v19, v19, v20")
    a("v_lshlrev_b32 v20, 4, v18")
    a("v_add_u32 v19, v19, v20")
    a(f"v_add_u32 v8, {LDS_SC}, v19")
    a("v_add_u32 v19, -1, v16")
    a("v_lshlrev_b32 v19, 3, v19")
    a("v_and_b32 v19, 31, v19")
    a("v_lshlrev_b32 v20, 5, v17")
    a("v_add_u32 v19, v19, v20")
    a("v_and_b32 v20, 1, v17")
    a("v_lshlrev_b32 v20, 3, v20")
    a("v_add_u32 v20, 128, v20")
    a("v_cmp_eq_u32 vcc, 0, v16")
    a("s_nop 1")
    a("v_cndmask_b32 v19, v19, v20, vcc")
    a("v_mul_u32_u24 v20, 144, v18")
    a("v_add_u32 v19, v19, v20")
    a(f"v_add_u32 v0, {LDS_PB}, v19")
    a("v_and_b32 v19, 7, v2")
    a("v_mul_u32_u24 v19, 144, v19")
    a("v_lshrrev_b32 v20, 4, v2")
    a("v_lshlrev_b32 v20, 5, v20")
    a("v_add_u32 v19, v19, v20")
    a(f"v_add_u32 v15, {LDS_PB}, v19")
    a("v_and_b32 v19, 7, v2")
    a("v_mul_u32_u24 v19, 144, v19")
    a("v_lshrrev_b32 v20, 4, v2")
    a("v_lshlrev_b32 v20, 2, v20")
    a("v_add_u32 v19, v19, v20")
    a(f"v_add_u32 v77, {LDS_PB+128}, v19")
    a("v_lshrrev_b32 v19, 5, v2")
    a("v_lshlrev_b32 v19, 8, v19")
    a("v_and_b32 v20, 7, v2")
    a("v_lshlrev_b32 v20, 5, v20")
    a("v_add_u32 v19, v19, v20")
    a("v_bfe_u32 v20, v2, 4, 1")
    a("v_lshlrev_b32 v20, 3, v20")
    a("v_add_u32 v19, v19, v20")
    a("s_lshl_b32 s25, s3, 9")
    a(f"s_add_u32 s25, s25, {LDS_OX}")
    a("v_add_u32 v9, s25, v19")
    a("v_bfe_u32 v21, v2, 2, 2")
    a("v_lshlrev_b32 v21, 1, v21")
    a("v_and_b32 v20, 1, v2")
    a("v_add_u32 v21, v21, v20")
    a("v_bfe_u32 v22, v2, 1, 1")
    a("v_lshrrev_b32 v19, 5, v2")
    a("v_lshlrev_b32 v19, 9, v19")
    a("v_bfe_u32 v20, v2, 4, 1")
    a("v_lshlrev_b32 v20, 8, v20")
    a("v_add_u32 v19, v19, v20")
    a("v_lshlrev_b32 v20, 5, v21")
    a("v_add_u32 v19, v19, v20")
    a("v_lshlrev_b32 v20, 4, v22")
    a("v_add_u32 v19, v19, v20")
    a(f"v_add_u32 v10, {LDS_OX}, v19")
    a("v_mov_b32 v74, 0x44444444")
    a("v_mov_b32 v20, 0xeeeeeeee")
    a("v_cmp_eq_u32 vcc, 1, v22")
    a("s_nop 1")
    a("v_cndmask_b32 v74, v74, v20, vcc")
    a("v_bfe_u32 v19, v2, 1, 2")
    a("v_lshrrev_b32 v20, 4, v2")
    a("v_and_b32 v23, 1, v2")
    a("v_lshlrev_b32 v23, 4, v23")
    a("v_mov_b32 v24, 0x3f80")
    a("v_lshlrev_b32 v24, v23, v24")
    a("v_cmp_eq_u32 vcc, v19, v20")
    a("s_nop 1")
    a("v_cndmask_b32 v24, 0, v24, vcc")
    a("v_bfe_u32 v19, v2, 3, 1")
    a("v_cmp_eq_u32 vcc, 0, v19")
    a("s_nop 1")
    a("v_cndmask_b32 v72, 0, v24, vcc")
    a("v_cndmask_b32 v73, v24, 0, vcc")
    a("v_lshrrev_b32 v19, 4, v2")
    a("v_lshlrev_b32 v19, 8, v19")
    a("v_and_b32 v20, 7, v2")
    a("v_lshlrev_b32 v20, 4, v20")
    a("v_add_u32 v75, v19, v20")
    a("v_lshrrev_b32 v19, 5, v2")
    a("v_lshlrev_b32 v19, 7, v19")
    a("v_and_b32 v20, 15, v2")
    a("v_lshlrev_b32 v20, 3, v20")
    a("v_add_u32 v19, v19, v20")
    a("v_bfe_u32 v20, v2, 4, 1")
    a("v_lshlrev_b32 v20, 2, v20")
    a("v_add_u32 v76, v19, v20")
    a("s_lshl_b32 s25, s3, 13")
    a(f"s_add_u32 s25, s25, {LDS_WO}")
    a("v_add_u32 v11, s25, v3")
    a("v_add_u32 v1, 65536, v11")
    a("v_lshrrev_b32 v12, 3, v2")
    a("v_lshlrev_b32 v12, 14, v12")
    a("v_and_b32 v13, 7, v2")
    a("v_lshlrev_b32 v13, 4, v13")
    a("v_add_u32 v12, v12, v13")
    a("s_lshl_b32 s25, s6, 7")
    a("s_lshl_b32 s26, s3, 17")
    a("s_add_u32 s25, s25, s26")
    a("v_add_u32 v12, s25, v12")
    a("s_lshl_b32 s25, s6, 14")
    a("s_lshl_b32 s26, s3, 12")
    a("s_add_u32 s25, s25, s26")
    a("v_add_u32 v13, s25, v3")
    a("v_lshrrev_b32 v14, 5, v2")
    a("v_lshlrev_b32 v14, 8, v14")
    a("v_bfe_u32 v16, v2, 1, 1")
    a("v_lshlrev_b32 v16, 5, v16")
    a("v_add_u32 v14, v14, v16")
    a("v_bfe_u32 v16, v2, 4, 1")
    a("v_lshlrev_b32 v16, 4, v16")
    a("v_add_u32 v14, v14, v16")
    a("v_bfe_u32 v16, v2, 2, 1")
    a("v_lshlrev_b32 v16, 2, v16")
    a("v_add_u32 v14, v14, v16")
    a("s_lshr_b32 s25, s6, 3")
    a("s_lshl_b32 s25, s25, 11")
    a("s_lshl_b32 s26, s3, 9")
    a("s_add_u32 s25, s25, s26")
    a("s_bfe_u32 s26, s6, 0x20001")
    a("s_lshl_b32 s26, s26, 6")
    a("s_add_u32 s25, s25, s26")
    a("s_and_b32 s26, s6, 1")
    a("s_lshl_b32 s26, s26, 3")
    a("s_add_u32 s25, s25, s26")
    a("v_add_u32 v14, s25, v14")
    a("v_lshlrev_b32 v78, 10, v21")
    a("v_lshrrev_b32 v19, 4, v2")
    a("v_lshlrev_b32 v19, 5, v19")
    a("v_add_u32 v78, v78, v19")
    a("v_lshlrev_b32 v19, 2, v22")
    a("v_add_u32 v78, v78, v19")
    a("s_lshl_b32 s25, s3, 8")
    a("v_add_u32 v78, s25, v78")
    a("v_and_b32 v79, 31, v2")
    a("v_lshlrev_b32 v79, 6, v79")
    a("v_lshrrev_b32 v19, 5, v2")
    a(f"v_mul_u32_u24 v19, {(OFF_VF-OFF_KF)>>8}, v19")
    a("v_lshlrev_b32 v19, 8, v19")
    a("v_add_u32 v79, v79, v19")
    a("s_lshl_b32 s25, s6, %d" % KV_HSH); a("s_lshl_b32 s26, s3, 11"); a("s_add_u32 s25, s25, s26")
    a(f"s_add_u32 s25, s25, {OFF_KF + KV_SST}")
    a("v_add_u32 v79, s25, v79")
    a("s_mov_b32 s38, 0x00550055"); a("s_mov_b32 s39, 0x00550055")
    a("s_lshl_b32 s25, s6, %d" % KV_HSH)
    a("s_lshl_b32 s26, s3, 11")
    a("s_add_u32 s25, s25, s26")
    a(f"s_add_u32 s26, s25, {OFF_KF}")
    a("s_add_u32 s12, s4, s26"); a("s_addc_u32 s13, s5, 0")
    a(f"s_add_u32 s26, s25, {OFF_VF}")
    a("s_add_u32 s14, s4, s26"); a("s_addc_u32 s15, s5, 0")
    a("s_lshl_b32 s25, s6, %d" % KM_HSH)
    a("s_lshl_b32 s26, s3, 10")
    a("s_add_u32 s25, s25, s26")
    a(f"s_add_u32 s26, s25, {OFF_KMF}")
    a("s_add_u32 s16, s4, s26"); a("s_addc_u32 s17, s5, 0")
    a(f"s_add_u32 s26, s25, {OFF_VMF}")
    a("s_add_u32 s18, s4, s26"); a("s_addc_u32 s19, s5, 0")
    add64_imm(a, 26, 4, OFF_MEM + 8192)
    q = " sc1" if fused else ""
    def pf_k(q=q):
        a(f"global_load_dwordx4 {vr(KX,4)}, v3, s[12:13]{q}")
        a(f"global_load_dwordx4 {vr(KX+4,4)}, v3, s[12:13] offset:1024{q}")
        a(f"s_add_u32 s12, s12, {KV_SST}"); a(f"s_addc_u32 s13, s13, 0")
    def pf_v(q=q):
        a(f"global_load_lds_dwordx4 v3, s[14:15]{q}")
        a(f"global_load_lds_dwordx4 v3, s[14:15] offset:1024{q}")
        a(f"s_add_u32 s14, s14, {KV_SST}"); a(f"s_addc_u32 s15, s15, 0")
    a("s_lshl_b32 s35, s6, 4")
    a("s_lshl_b32 s25, s3, 2")
    a("s_add_u32 s35, s35, s25")
    a(f"s_add_u32 s35, s35, {F_M}")
    a("s_mov_b32 s7, 0")
    if PROF:
        for i in range(10): a(f"s_mov_b32 s{50+i}, 0")
        a("s_mov_b32 s70, 0"); a("s_mov_b32 s71, 0")
        a("s_memtime s[40:41]"); a("s_waitcnt lgkmcnt(0)"); a("s_mov_b32 s42, s40")
    a("s_waitcnt vmcnt(0) lgkmcnt(0)")
    a("s_cmp_lg_u32 s47, 0")
    a("s_cbranch_scc1 CH_SLOWSTART")
    a("s_add_u32 s34, s34, 64")
    a(f"s_add_u32 s12, s12, {KV_SST}"); a(f"s_addc_u32 s13, s13, 0")
    a(f"s_add_u32 s14, s14, {KV_SST}"); a(f"s_addc_u32 s15, s15, 0")
    tl(a, 2)
    a("s_barrier")
    a("s_branch CH_FAST_LOOP")
    a.label("CH_SLOWSTART")
    a("v_mov_b32 v16, 128")
    a.label("CH_NONW")
    a("global_load_dword v17, v16, s[28:29] sc0 sc1")
    a("s_waitcnt vmcnt(0)")
    a(f"v_readfirstlane_b32 s{CNONCE}, v17")
    a(f"s_cmp_eq_u32 s{CNONCE}, 0")
    a("s_cbranch_scc1 CH_NONW")
    a("v_min_u32 v16, 47, v2"); a("v_lshlrev_b32 v16, 3, v16"); a(f"v_add_u32 v16, {F_INIT}, v16")
    a.label("CH_INITW")
    a("global_load_dwordx2 v[18:19], v16, s[4:5] sc1")
    a("s_waitcnt vmcnt(0)")
    a(f"v_xor_b32 v18, s{CNONCE}, v18"); a(f"v_xor_b32 v19, s{CNONCE}, v19"); a("v_or_b32 v18, v18, v19")
    a("v_cmp_ne_u32 vcc, 0, v18")
    a("s_cbranch_vccnz CH_INITW")
    kvflag_poll(a, "CH_KVF0")
    tl(a, 2)
    pf_k(); pf_v()
    a("v_add_u32 v18, 64, v2")
    a.label("CH_MODE")
    a("global_load_ubyte v17, v2, s[28:29] sc0 sc1")
    a("global_load_ubyte v19, v18, s[28:29] sc0 sc1")
    a("s_waitcnt vmcnt(0)")
    a("v_min_u32 v16, v17, v19")
    a("v_cmp_eq_u32 vcc, 0, v16")
    a("s_cbranch_vccnz CH_MODE")
    a("v_cmp_ne_u32 vcc, s24, v17")
    a("s_or_b32 s25, vcc_lo, vcc_hi")
    a("v_cmp_ne_u32 vcc, s24, v19")
    a("s_or_b32 s25, s25, vcc_lo")
    a("s_or_b32 s25, s25, vcc_hi")
    a("s_barrier")
    a("s_cmp_lg_u32 s25, 0")
    a("s_cbranch_scc1 CH_SLOW_LOOP")
    for fast in (True, False):
        gen_loop(a, fast, pf_k, pf_v)
    a.label("CH_FIN")
    if TL:
        tl(a, 3)
        a("s_lshl_b32 s25, s6, 2"); a("s_add_u32 s25, s25, s3"); a("s_lshl_b32 s25, s25, 5")
        a(f"s_add_u32 s25, s25, {4*MB+131072}")
        a("v_mov_b32 v16, s25")
        for i in range(4):
            a(f"v_mov_b32 v17, s{80+2*i}")
            a(f"global_store_dword v16, v17, s[4:5] offset:{4*i}")
    if fused:
        a("s_waitcnt vmcnt(0)")
        mflag_store(a)
    if PROF:
        a("s_lshl_b32 s25, s6, 2"); a("s_add_u32 s25, s25, s3"); a("s_lshl_b32 s25, s25, 6")
        a(f"s_add_u32 s25, s25, {4*MB+131072}")
        a("v_mov_b32 v16, s25")
        for i in range(10):
            a(f"v_mov_b32 v17, s{(60 if PROF==2 else 50)+i}")
            a(f"global_store_dword v16, v17, s[4:5] offset:{4*i}")
        for i in range(2):
            a(f"v_mov_b32 v17, s{70+i}")
            a(f"global_store_dword v16, v17, s[4:5] offset:{40+4*i}")
    if fused:
        a("s_endpgm")
        from k_work import gen_worker
        gen_worker(a)
    a.label("CH_END")
    a.end(name, 512, 256)

def gen_loop(a, fast, pf_k, pf_v):
    tag = "FAST" if fast else "SLOW"
    sc = "" if fast else " sc1"
    MF = 16
    AQ, AK, AV = 48, 56, 64
    T = 112
    IDX = "v74"
    L = LdsSB(a)
    a.label(f"CH_{tag}_LOOP")
    stamp(a, 0)
    if int(os.environ.get("STEPT", "0")):
        a("s_and_b32 s25, s7, 3"); a("s_cmp_lg_u32 s25, 0"); a(f"s_cbranch_scc1 CH_{tag}_NST")
        a("s_memrealtime s[40:41]")
        a("s_lshl_b32 s25, s6, 2"); a("s_add_u32 s25, s25, s3"); a("s_lshl_b32 s25, s25, 6")
        a("s_add_u32 s25, s25, s7")
        a(f"s_add_u32 s25, s25, {4*MB+131072}")
        a("v_mov_b32 v120, s25")
        a("s_waitcnt lgkmcnt(0)")
        a("v_mov_b32 v121, s40")
        a("global_store_dword v120, v121, s[4:5]")
        a.label(f"CH_{tag}_NST")
    a("s_cmp_eq_u32 s7, 0")
    a(f"s_cbranch_scc1 CH_{tag}_FIRST")
    for _ in range(int(os.environ.get("MDELAY", "0"))): a("s_nop 15")
    a.label(f"CH_{tag}_MPOLL")
    if PROF: a("s_add_u32 s71, s71, 1")
    a("global_load_dwordx4 v[112:115], v4, s[8:9] sc1")
    a("global_load_dwordx4 v[116:119], v4, s[8:9] offset:1024 sc1")
    for i in range(12): a(f"v_mov_b64 {vr(AQ+2*i,2)}, 0")
    a("s_waitcnt vmcnt(0)")
    a("v_max3_u32 v120, v112, v113, v114")
    a("v_max3_u32 v121, v115, v116, v117")
    a("v_max3_u32 v120, v120, v118, v119")
    a("v_max_u32 v120, v120, v121")
    a("v_cmp_eq_u32 vcc, -1, v120")
    a(f"s_cbranch_vccnz CH_{tag}_MPOLL")
    a(f"s_branch CH_{tag}_GOT")
    a.label(f"CH_{tag}_FIRST")
    for u in range(2):
        for G in range(4):
            a(f"global_load_dword v{112+4*u+G}, v78, s[8:9] offset:{u*128+G*8}")
    a("v_mov_b32 v78, v79")
    a("v_and_b32 v2, 15, v2"); a("v_lshlrev_b32 v2, 2, v2")
    for i in range(12): a(f"v_mov_b64 {vr(AQ+2*i,2)}, 0")
    a("s_waitcnt vmcnt(0)")
    a.label(f"CH_{tag}_GOT")
    stamp(a, 1)
    a("ds_write_b128 v5, v[112:115]")
    a("ds_write_b128 v5, v[116:119] offset:1024")
    a("s_waitcnt lgkmcnt(0)")
    a("s_barrier")
    for i in range(8):
        L.issue(f"ds_read_b128 {vr(MF+4*i,4)}, v6 offset:{i*1024}", ("m", i))
    for t in range(2):
        L.issue(f"ds_read_b128 {vr(VX+4*t,4)}, v5 offset:{LDS_VL - LDS_MEMS + t*1024}", ("v", t))
    stamp(a, 2)
    if FUSED:
        a("s_cmp_eq_u32 s7, 0")
        a(f"s_cbranch_scc1 CH_{tag}_NOMF")
        mflag_store(a, 120)
        a.label(f"CH_{tag}_NOMF")
    if WARM:
        a("s_cmp_ge_u32 s7, 62")
        a(f"s_cbranch_scc1 CH_{tag}_NOWU")
        a("s_and_b32 s25, s7, 7")
        a("s_cmp_lg_u32 s25, 5")
        a(f"s_cbranch_scc1 CH_{tag}_NOWU")
        a("s_add_u32 s48, s4, s34"); a("s_addc_u32 s49, s5, 0")
        a("global_load_dword v79, v2, s[48:49] sc1")
        a.label(f"CH_{tag}_NOWU")
    a("s_add_u32 s25, s7, 3"); a("s_and_b32 s25, s25, 3"); a("s_lshl_b32 s25, s25, 13")
    a(f"s_add_u32 s25, s25, {OFF_MEM}")
    a("s_add_u32 s36, s4, s25"); a("s_addc_u32 s37, s5, 0")
    a("v_mov_b32 v120, -1")
    a("s_mov_b64 exec, s[38:39]")
    a(f"global_store_dword v14, v120, s[36:37]{sc}")
    a("s_mov_b64 exec, -1")
    a("s_lshr_b32 s30, s7, 2"); a("s_and_b32 s30, s30, 1"); a("s_sub_u32 s31, 0, s30")
    for u in range(8):
        L.wait(("m", u))
        A = vr(MF+4*u, 4)
        for t in range(2):
            a(f"v_smfmac_f32_16x16x64_bf16 {vr(AQ+4*t,4)}, {A}, {ar((u*2+t)*8,8)}, {IDX}")
        for t in range(2):
            a(f"v_smfmac_f32_16x16x64_bf16 {vr(AK+4*t,4)}, {A}, {ar(128+(u*2+t)*8,8)}, {IDX}")
    stamp(a, 3)
    if VEARLY:
        a("s_cmp_eq_u32 s7, 63")
        a(f"s_cbranch_scc1 CH_{tag}_NOPFV")
        L.wait(("v", 1))
        pf_v("")
        a.label(f"CH_{tag}_NOPFV")
    vstate = {"i": 0}
    def vnext(n):
        for _ in range(n):
            idx = vstate["i"]
            if idx >= 16: return
            u, t = idx >> 1, idx & 1
            a(f"v_smfmac_f32_16x16x64_bf16 {vr(AV+4*t,4)}, {vr(MF+4*u,4)}, {vr(128+(u*2+t)*8,8)}, {IDX}")
            vstate["i"] = idx + 1
    vnext(2)
    a("s_nop 1")
    for t in range(2):
        for e in range(2):
            a(f"v_add_f32 v{AQ+4*t+e}, v{AQ+4*t+e}, v{AQ+4*t+2+e}")
            a(f"v_add_f32 v{AK+4*t+e}, v{AK+4*t+e}, v{AK+4*t+2+e}")
        a(f"v_cvt_pk_bf16_f32 v{80+2*t}, v{AQ+4*t}, v{AQ+4*t+1}")
        a(f"v_cvt_pk_bf16_f32 v{81+2*t}, v{AK+4*t}, v{AK+4*t+1}")
        if t == 0: vnext(1)
    a("s_nop 1")
    a("v_mfma_f32_16x16x16_bf16 v[84:87], v[80:81], v[72:73], 0")
    a("v_mfma_f32_16x16x16_bf16 v[88:91], v[82:83], v[72:73], 0")
    vnext(2)
    a("s_nop 1")
    a("v_cvt_pk_bf16_f32 v92, v84, v85")
    a("v_cvt_pk_bf16_f32 v93, v86, v87")
    a("v_cvt_pk_bf16_f32 v94, v88, v89")
    a("v_cvt_pk_bf16_f32 v95, v90, v91")
    a("s_nop 1")
    a("v_mfma_f32_16x16x32_bf16 v[112:115], v[92:95], v[92:95], 0")
    a(f"v_mfma_f32_16x16x32_bf16 v[116:119], {vr(KX,4)}, v[92:95], 0")
    a(f"v_mfma_f32_16x16x32_bf16 v[120:123], {vr(KX+4,4)}, v[92:95], 0")
    a("s_mov_b64 exec, s[44:45]")
    if not int(os.environ.get("NOPF", "0")) & 4: a("global_store_dwordx4 v75, v[92:95], s[16:17]" + (" sc1" if FUSED else ""))
    a("s_mov_b64 exec, -1")
    vnext(2)
    a("s_mov_b64 exec, s[20:21]")
    L.issue("ds_write_b128 v7, v[112:115]")
    L.issue("ds_write_b128 v7, v[116:119] offset:576")
    L.issue("ds_write_b128 v7, v[120:123] offset:1152")
    a("s_mov_b64 exec, -1")
    a("s_cmp_eq_u32 s7, 63")
    a(f"s_cbranch_scc1 CH_{tag}_NOPFK")
    NOPF = int(os.environ.get("NOPF", "0"))
    if not NOPF & 1: pf_k("")
    if not VEARLY:
        L.wait(("v", 1))
        if not NOPF & 2: pf_v("")
    a.label(f"CH_{tag}_NOPFK")
    vnext(2)
    L.waitall()
    a("s_barrier")
    stamp(a, 4)
    for w in range(4):
        L.issue(f"ds_read_b128 {vr(T+4*w,4)}, v8 offset:{w*2304}", ("s", w))
    BUF = [48, 56, 64, 80, 88]
    def wread(x):
        nt, i = x >> 1, x & 1
        b = BUF[x % 5]
        base = "v1" if i else "v11"
        L.issue(f"ds_read_b128 {vr(b,4)}, {base} offset:{nt*1024}", ("w", x))
        L.issue(f"ds_read_b128 {vr(b+4,4)}, {base} offset:{32768+nt*1024}", ("w", x))
    for x in range(2): wread(x)
    vnext(16)
    q = " sc1" if FUSED else ""
    fill = []
    for i in range(4): fill.append(f"v_mov_b64 {vr(MF+2*i,2)}, 0")
    for t in range(2):
        for e in range(2):
            fill.append(f"v_add_f32 v{AV+4*t+e}, v{AV+4*t+e}, v{AV+4*t+2+e}")
    for t in range(2):
        fill.append(f"v_cvt_pk_bf16_f32 v{80+2*t}, v{AV+4*t}, v{AV+4*t+1}")
        fill.append(f"v_mov_b32 v{81+2*t}, 0")
    if int(os.environ.get("NOPF", "0")) & 4:
        fill.append("s_nop 0"); fill.append("s_nop 0")
    else:
        fill.append("global_store_dword v76, v80, s[18:19]" + q)
        fill.append("global_store_dword v76, v82, s[18:19] offset:512" + q)
    for i in range(4, 16): fill.append(f"v_mov_b64 {vr(MF+2*i,2)}, 0")
    L.wait(("s", 3))
    S = T
    t0, t1, tm, tc = 124, 125, 126, 127
    vl = []
    for r in range(4):
        vl.append(f"v_add_f32 v{S+r}, v{S+r}, v{S+4+r}")
        vl.append(f"v_add_f32 v{S+8+r}, v{S+8+r}, v{S+12+r}")
    for r in range(4):
        vl.append(f"v_add_f32 v{S+r}, v{S+r}, v{S+8+r}")
    def rnd():
        vl.append(f"v_cvt_pk_bf16_f32 v{t0}, v{S}, v{S+1}")
        vl.append(f"v_cvt_pk_bf16_f32 v{t1}, v{S+2}, v{S+3}")
        vl.append(f"v_lshlrev_b32 v{S}, 16, v{t0}")
        vl.append(f"v_and_b32 v{S+1}, 0xffff0000, v{t0}")
        vl.append(f"v_lshlrev_b32 v{S+2}, 16, v{t1}")
        vl.append(f"v_and_b32 v{S+3}, 0xffff0000, v{t1}")
    rnd()
    for r in range(4): vl.append(f"v_mul_f32 v{S+r}, 0x{SCALE:08x}, v{S+r}")
    rnd()
    vl.append(f"v_mov_b32 v{tc}, 0xff800000")
    for r in range(4): vl.append(f"v_cndmask_b32 v{S+r}, v{tc}, v{S+r}, s[22:23]")
    vl.append(f"v_max3_f32 v{tm}, v{S}, v{S+1}, v{S+2}")
    vl.append(f"v_max_f32 v{tm}, v{tm}, v{S+3}")
    ctl = ["quad_perm:[1,0,3,2]", "quad_perm:[2,3,0,1]", "row_half_mirror", "row_mirror"]
    for c in ctl:
        vl.append("ZERO2")
        vl.append(f"v_max_f32_dpp v{tm}, v{tm}, v{tm} {c} row_mask:0xf bank_mask:0xf")
    vl.append(f"v_mov_b32 v{tc}, 0x{LOG2E:08x}")
    for r in range(4):
        vl.append(f"v_sub_f32 v{S+r}, v{S+r}, v{tm}")
        vl.append(f"v_mul_f32 v{S+r}, v{tc}, v{S+r}")
        vl.append(f"v_exp_f32 v{S+r}, v{S+r}")
    vl.append("s_nop 0")
    vl.append(f"v_add_f32 v{tm}, v{S}, v{S+1}")
    vl.append(f"v_add_f32 v{tc}, v{S+2}, v{S+3}")
    vl.append(f"v_add_f32 v{tm}, v{tm}, v{tc}")
    for c in ctl:
        vl.append("ZERO2")
        vl.append(f"v_add_f32_dpp v{tm}, v{tm}, v{tm} {c} row_mask:0xf bank_mask:0xf")
    vl.append(f"v_rcp_f32 v{tm}, v{tm}")
    vl.append("s_nop 0")
    for r in range(4): vl.append(f"v_mul_f32 v{S+r}, v{S+r}, v{tm}")
    vl.append(f"v_cvt_pk_bf16_f32 v{t0}, v{S}, v{S+1}")
    vl.append(f"v_cvt_pk_bf16_f32 v{t1}, v{S+2}, v{S+3}")
    for ins in vl:
        if ins == "ZERO2":
            for _ in range(2): a(fill.pop(0))
        else:
            a(ins)
    a("s_mov_b64 exec, s[32:33]")
    L.issue(f"ds_write_b64 v0, v[{t0}:{t1}]")
    a("s_mov_b64 exec, -1")
    wread(2)
    while fill: a(fill.pop(0))
    a(f"s_add_u32 s16, s16, {KM_SST}"); a(f"s_addc_u32 s17, s17, 0")
    a(f"s_add_u32 s18, s18, {KM_SST}"); a(f"s_addc_u32 s19, s19, 0")
    L.waitall()
    a("s_barrier")
    L.issue("ds_read_b128 v[112:115], v15", "px")
    L.issue("ds_read_b32 v116, v77", "pm")
    a("v_mov_b32 v117, 0")
    a("s_cmp_eq_u32 s7, 63")
    a("s_cbranch_scc1 CH_FIN")
    L.wait("px", "pm")
    stamp(a, 5)
    for t in range(2):
        a(f"v_mfma_f32_16x16x32_bf16 {vr(88+4*t,4)}, {vr(VX+4*t,4)}, v[112:115], 0")
    for t in range(2):
        a(f"v_mfma_f32_16x16x16_bf16 {vr(88+4*t,4)}, {vr(80+2*t,2)}, v[116:117], {vr(88+4*t,4)}")
    LATM = int(os.environ.get("LATM", "0"))
    if LATM == 1:
        a("s_waitcnt vmcnt(0)"); stamp(a, 6)
    if LATM == 1:
        a("s_waitcnt vmcnt(0)"); stamp(a, 9)
    a("s_nop 5")
    a("v_cvt_pk_bf16_f32 v120, v88, v89")
    a("v_cvt_pk_bf16_f32 v122, v90, v91")
    a("v_cvt_pk_bf16_f32 v121, v92, v93")
    a("v_cvt_pk_bf16_f32 v123, v94, v95")
    a("s_mov_b64 exec, s[20:21]")
    L.issue("ds_write2_b64 v9, v[120:121], v[122:123] offset0:0 offset1:2")
    a("s_mov_b64 exec, -1")
    for x in range(3, 5): wread(x)
    L.waitall()
    a("s_barrier")
    for i in range(2):
        L.issue(f"ds_read_b128 {vr(T+4*i,4)}, v10 offset:{i*1024}", ("o", i))
    stamp(a, 6)
    WA = MF
    a("s_and_b32 s25, s7, 3")
    a("s_lshl_b32 s25, s25, 19")
    a(f"s_add_u32 s25, s25, {OFF_P}")
    a("s_add_u32 s10, s4, s25"); a("s_addc_u32 s11, s5, 0")
    def pstore(p):
        A = WA + 8*p; B = A + 4
        a(f"v_add_f32 v{A}, v{A}, v{A+2}")
        a(f"v_add_f32 v{A+1}, v{A+1}, v{A+3}")
        a(f"v_add_f32 v{A+2}, v{B}, v{B+2}")
        a(f"v_add_f32 v{A+3}, v{B+1}, v{B+3}")
        for r in range(4):
            a(f"v_and_or_b32 v{A+r}, v{A+r}, -2, s30")
        if p: a(f"v_add_u32 v{A+4}, {p*4096}, v12")
        a(f"global_store_dwordx4 v{12 if p == 0 else A+4}, {vr(A,4)}, s[10:11]{sc}")
    for x in range(16):
        nt, i = x >> 1, x & 1
        b = BUF[x % 5]
        if x < 2: L.wait(("o", i), ("w", x))
        else: L.wait(("w", x))
        a(f"v_smfmac_f32_16x16x64_bf16 {vr(WA+4*nt,4)}, {vr(T+4*i,4)}, {vr(b,8)}, {IDX}")
        if x + 5 < 16: wread(x + 5)
        if x % 4 == 1 and x >= 4:
            pstore(x//4 - 1)
    a("s_nop 7")
    pstore(3)
    stamp(a, 7)
    for _ in range(int(os.environ.get("PDELAY", "4"))): a("s_nop 15")
    a.label(f"CH_{tag}_PPOLL")
    if PROF: a("s_add_u32 s70, s70, 1")
    for i in range(4):
        a(f"global_load_dwordx4 {vr(16+4*i,4)}, v13, s[10:11] offset:{i*1024} sc1")
    a("s_waitcnt vmcnt(0)")
    for i in range(8): a(f"v_bitop3_b32 v{32+i}, v{16+2*i}, v{17+2*i}, s31 bitop3:0x7e")
    a("v_or3_b32 v32, v32, v33, v34"); a("v_or3_b32 v35, v35, v36, v37"); a("v_or3_b32 v32, v32, v38, v39"); a("v_or_b32 v32, v32, v35")
    a("v_and_b32 v32, 1, v32")
    a("v_cmp_ne_u32 vcc, 0, v32")
    a(f"s_cbranch_vccnz CH_{tag}_PPOLL")
    stamp(a, 8)
    for c in range(4):
        a(f"v_add_f32 v{16+c}, v{16+c}, v{20+c}")
        a(f"v_add_f32 v{24+c}, v{24+c}, v{28+c}")
    for c in range(4):
        a(f"v_add_f32 v{16+c}, v{16+c}, v{24+c}")
    a("s_nop 0")
    a("v_permlane32_swap_b32 v16, v18"); a("v_permlane32_swap_b32 v17, v19")
    a("s_nop 0")
    a("v_add_f32 v16, v16, v18"); a("v_add_f32 v17, v17, v19")
    a("s_nop 1")
    a("v_permlane16_swap_b32 v16, v17")
    a("s_nop 0")
    a("v_add_f32 v16, v16, v17")
    a("s_nop 1")
    a("v_add_f32_dpp v16, v16, v16 row_ror:8 row_mask:0xf bank_mask:0xf")
    a("s_nop 1")
    a("v_mov_b32_dpp v17, v16 quad_perm:[1,1,3,3] row_mask:0xf bank_mask:0xf")
    a("v_cvt_pk_bf16_f32 v16, v16, v17")
    a("v_min_u32 v16, -2, v16")
    a("s_mov_b64 exec, s[38:39]")
    a(f"global_store_dword v14, v16, s[26:27]{sc}")
    if DBGMEM:
        a("s_lshl_b32 s25, s7, 13")
        a(f"s_add_u32 s25, s25, {OFF_MEMH + 8192}")
        a("s_add_u32 s36, s4, s25"); a("s_addc_u32 s37, s5, 0")
        a(f"global_store_dword v14, v16, s[36:37]")
    a("s_mov_b64 exec, -1")
    a("s_and_b32 s25, s7, 7")
    a("s_cmp_lg_u32 s25, 5")
    a(f"s_cbranch_scc1 CH_{tag}_KVOK")
    a("s_cmp_ge_u32 s7, 56")
    a(f"s_cbranch_scc1 CH_{tag}_KVOK")
    a.label(f"CH_{tag}_KVE")
    a(f"v_cmp_ne_u32 vcc, s{CNONCE}, v79")
    a("s_and_b32 s25, vcc_lo, 0x6666")
    a(f"s_cbranch_scc0 CH_{tag}_KVP")
    a("s_add_u32 s48, s4, s34"); a("s_addc_u32 s49, s5, 0")
    a("global_load_dword v79, v2, s[48:49] sc1")
    a("s_waitcnt vmcnt(0)")
    a(f"s_branch CH_{tag}_KVE")
    a.label(f"CH_{tag}_KVP")
    a("s_add_u32 s34, s34, 64")
    a.label(f"CH_{tag}_KVOK")
    a("s_mov_b64 s[8:9], s[26:27]")
    a("s_add_u32 s7, s7, 1")
    a("s_add_u32 s25, s7, 1")
    a("s_and_b32 s25, s25, 3")
    a("s_lshl_b32 s25, s25, 13")
    a(f"s_add_u32 s25, s25, {OFF_MEM}")
    a("s_add_u32 s26, s4, s25"); a("s_addc_u32 s27, s5, 0")
    a(f"s_branch CH_{tag}_LOOP")
```

```python
from common import *
import re
OFF_XN2 = OFF_XNF
SELW = 224

def remap(a, off, lo=3):
    def f(m):
        n = int(m.group(1)); return f"v{n+off}" if n >= lo else m.group(0)
    def g(m):
        x, y = int(m.group(1)), int(m.group(2))
        return f"v[{x+off}:{y+off}]" if x >= lo else m.group(0)
    def w(txt):
        txt = re.sub(r"v\[(\d+):(\d+)\]", g, txt)
        txt = re.sub(r"\bv(\d+)\b", f, txt)
        a(txt)
    w.label = a.label
    return w

def ln_row(a, sc):
    for i in range(4):
        a(f"v_lshlrev_b32 v{16+2*i}, 16, v{8+i}")
        a(f"v_and_b32 v{17+2*i}, 0xffff0000, v{8+i}")
        a(f"v_lshlrev_b32 v{24+2*i}, 16, v{12+i}")
        a(f"v_and_b32 v{25+2*i}, 0xffff0000, v{12+i}")
    a("v_add_f32 v32, v16, v17")
    for i in range(2, 8):
        a(f"v_add_f32 v32, v32, v{16+i}")
    wave_reduce(a, 32, 33)
    a("v_mul_f32 v32, 0x3b000000, v32")
    a("v_sub_f32 v34, v16, v32")
    a("v_mul_f32 v35, v34, v34")
    for i in range(1, 8):
        a(f"v_sub_f32 v34, v{16+i}, v32")
        a("v_fmac_f32 v35, v34, v34")
    wave_reduce(a, 35, 33)
    a("v_mul_f32 v35, 0x3b000000, v35")
    round_bf16(a, 35)
    a("v_add_f32 v35, 0x3727c5ac, v35")
    round_bf16(a, 35)
    a("v_sqrt_f32 v35, v35")
    a("s_nop 0")
    round_bf16(a, 35)
    a("v_rcp_f32 v35, v35")
    round_bf16(a, 32)
    for i in range(8):
        a(f"v_sub_f32 v{16+i}, v{16+i}, v32")
    for i in range(4):
        a(f"v_cvt_pk_bf16_f32 v{8+i}, v{16+2*i}, v{17+2*i}")
    for i in range(4):
        a(f"v_lshlrev_b32 v{16+2*i}, 16, v{8+i}")
        a(f"v_and_b32 v{17+2*i}, 0xffff0000, v{8+i}")
    for i in range(8):
        a(f"v_mul_f32 v{16+i}, v{16+i}, v35")
    for i in range(4):
        a(f"v_cvt_pk_bf16_f32 v{8+i}, v{16+2*i}, v{17+2*i}")
    for i in range(4):
        a(f"v_lshlrev_b32 v{16+2*i}, 16, v{8+i}")
        a(f"v_and_b32 v{17+2*i}, 0xffff0000, v{8+i}")
    a("v_mul_f32 v36, v16, v24")
    for i in range(1, 8):
        a(f"v_fmac_f32 v36, v{16+i}, v{24+i}")
    wave_reduce(a, 36, 33)
    round_bf16(a, 36)
    a(f"v_add_u32 v5, {OFF_XN}, v4")
    a("global_store_dwordx4 v5, v[8:11], s[4:5]" + sc)
    a("ds_write_b128 v37, v[8:11]")
    a("s_lshl_b32 s12, s10, 2")
    a(f"s_add_u32 s12, s12, {OFF_R}")
    a("v_mov_b32 v5, s12")
    a("s_mov_b64 exec, 1")
    a("global_store_dword v5, v36, s[4:5]" + sc)
    a("s_mov_b64 exec, -1")

NPRE = 16
TB = 131072
def pre_loads(a):
    load_ptr(a, 8, "x"); load_ptr(a, 50, "wr")
    a("s_lshl_b32 s52, s40, 4"); a("s_lshl_b32 s10, s3, 2"); a("s_add_u32 s52, s52, s10")
    a("v_lshlrev_b32 v192, 4, v2")
    a("s_lshl_b32 s10, s52, 10")
    a("v_add_u32 v193, s10, v192")
    a("s_waitcnt lgkmcnt(0)")
    a("s_cmp_ge_u32 s40, 128")
    a("s_cbranch_scc1 PRE_NOLD")
    a("global_load_dwordx4 v[212:215], v192, s[50:51]")
    for r in range(4):
        a(f"global_load_dwordx4 {vr(196+4*r,4)}, v193, s[8:9] offset:{1024*r}")
    a.label("PRE_NOLD")

def pre_init(a):
    sc = " sc1"
    a("s_sub_u32 s52, s40, 128"); a("s_lshl_b32 s52, s52, 2"); a("s_add_u32 s52, s52, s3")
    a("v_mov_b32 v212, -1"); a("v_mov_b32 v213, -1"); a("v_mov_b32 v214, -1"); a("v_mov_b32 v215, -1")
    for i in range(6):
        a(f"s_add_u32 s10, s52, {384*i}")
        if i == 5:
            a("s_cmp_ge_u32 s10, 2048"); a("s_cbranch_scc1 PRE_NOP2")
        a("s_lshl_b32 s10, s10, 10")
        a(f"s_add_u32 s10, s10, {OFF_P}")
        a("v_add_u32 v216, s10, v192")
        a("global_store_dwordx4 v216, v[212:215], s[4:5]" + sc)
    a.label("PRE_NOP2")
    a("s_cmp_ge_u32 s52, 32"); a("s_cbranch_scc1 PRE_NOMEM")
    a("s_lshl_b32 s10, s52, 10"); a(f"s_add_u32 s10, s10, {OFF_MEM}")
    a("v_add_u32 v216, s10, v192")
    a("global_store_dwordx4 v216, v[212:215], s[4:5]" + sc)
    a.label("PRE_NOMEM")

def pre_block(a):
    sc = " sc1"
    b = remap(a, 144)
    a("v_lshrrev_b32 v181, 2, v2")
    a("v_lshlrev_b32 v181, 10, v181")
    a("v_and_b32 v182, 3, v2")
    a("v_lshlrev_b32 v182, 8, v182")
    a("v_add_u32 v181, v181, v182")
    a("s_lshl_b32 s10, s3, 6")
    a(f"s_add_u32 s10, s10, {TB}")
    a("v_add_u32 v181, s10, v181")
    for r in range(4):
        a(f"s_add_u32 s10, s52, {r}")
        if r == 0: a(f"s_waitcnt vmcnt({NPRE})")
        for i in range(4):
            a(f"v_mov_b32 v{152+i}, v{196+4*r+i}")
            a(f"v_mov_b32 v{156+i}, v{212+i}")
        a(f"v_add_u32 v148, {1024*r}, v193")
        if r: a("v_add_u32 v181, 16, v181")
        ln_row(b, sc)
    a("s_waitcnt lgkmcnt(0)")
    a("s_barrier")
    a("s_lshl_b32 s10, s3, 12")
    a("v_add_u32 v181, s10, v192")
    a(f"v_add_u32 v182, {TB}, v181")
    for i in range(4):
        a(f"ds_read_b128 {vr(196+4*i,4)}, v182 offset:{1024*i}")
    a("s_lshl_b32 s10, s40, 14")
    a(f"s_add_u32 s10, s10, {OFF_XNF}")
    a("v_add_u32 v181, s10, v181")
    for i in range(4):
        a(f"s_waitcnt lgkmcnt({3-i})")
        a(f"global_store_dwordx4 v181, {vr(196+4*i,4)}, s[4:5] offset:{1024*i}" + sc)

def qkv_stage_addr(a):
    a("s_lshr_b32 s13, s11, 5")
    a("s_and_b32 s14, s11, 31")
    a("s_lshl_b32 s12, s13, 3")
    a("s_add_u32 s12, s12, 16")
    a("s_load_dwordx2 s[6:7], s[0:1], s12")
    a("v_bfe_u32 v4, v2, 2, 2")
    a("v_lshlrev_b32 v4, 3, v4")
    a("v_and_b32 v5, 3, v2")
    a("v_add_u32 v4, v4, v5")
    a("v_lshlrev_b32 v4, 13, v4")
    a("v_lshrrev_b32 v5, 4, v2")
    a("v_lshlrev_b32 v5, 4, v5")
    a("v_add_u32 v4, v4, v5")
    a("v_add_u32 v5, 32768, v4")
    a("s_lshl_b32 s15, s14, 8")
    a("s_lshl_b32 s16, s3, 20")
    a("s_add_u32 s15, s15, s16")
    a("s_waitcnt lgkmcnt(0)")
    a("s_add_u32 s6, s6, s15"); a("s_addc_u32 s7, s7, 0")

def qkv_stage_loads(a, q0=0, q1=4):
    for q in range(q0, q1):
        for cp in range(4):
            b = 16 + (q*4+cp)*8
            a(f"global_load_dwordx4 {vr(b,4)}, v4, s[6:7] offset:{cp*64}")
            a(f"global_load_dwordx4 {vr(b+4,4)}, v5, s[6:7] offset:{cp*64}")
        a("s_add_u32 s6, s6, 262144"); a("s_addc_u32 s7, s7, 0")

def qkv_stage(a):
    a("s_lshl_b32 s12, s10, 2")
    a("s_add_u32 s12, s12, s3")
    a("v_lshlrev_b32 v3, 4, v2")
    a("s_lshl_b32 s15, s3, 15")
    a("v_add_u32 v4, s15, v3")
    DT = [144, 160]
    units = [(q, cp) for q in range(4) for cp in range(4)]
    def finish(i):
        q, cp = units[i]
        tr_pack(a, DT[i & 1], 176, 180)
        a(f"ds_write_b128 v4, v[176:179] offset:{(q*8+2*cp)*1024}")
        a(f"ds_write_b128 v4, v[180:183] offset:{(q*8+2*cp+1)*1024}")
    for i, (q, cp) in enumerate(units):
        if i == 15:
            a("s_cmp_eq_u32 s55, 1"); a("s_cbranch_scc1 QS_W1")
            a("s_waitcnt vmcnt(0)"); a("s_branch QS_W2")
            a.label("QS_W1"); a("s_waitcnt vmcnt(1)"); a.label("QS_W2")
        else:
            a(f"s_waitcnt vmcnt({2*(15-i)})")
        b = 16 + i*8
        tr_unit(a, vr(b,4), vr(b+4,4), DT[i & 1], SELW)
        if i: finish(i-1)
    a("s_nop 7")
    finish(15)
    a("s_lshl_b32 s16, s12, 16")
    a(f"s_add_u32 s16, s16, {OFF_XNF}")
    a("s_add_u32 s22, s4, s16"); a("s_addc_u32 s23, s5, 0")
    for tt in range(4):
        a(f"v_add_u32 v{5+tt}, {tt*16384}, v3")
    a("v_add_u32 v9, 65536, v3")

def qkv_rest(a, pre, sc, endl):
    WB = [144, 176]
    def xreg(kk, tt):
        return ar(128 + kk*16 + tt*4, 4) if kk < 8 else vr(16 + (kk-8)*16 + tt*4, 4)
    def xloads(kk):
        for tt in range(4):
            a(f"global_load_dwordx4 {xreg(kk,tt)}, v{5+tt}, s[22:23] offset:{(kk&3)*1024}")
        if (kk & 3) == 3 and kk < 15:
            a("s_add_u32 s22, s22, 4096"); a("s_addc_u32 s23, s23, 0")
    def wreads(kk):
        for et in range(8):
            a(f"ds_read_b128 {vr(WB[kk&1]+et*4,4)}, v{3 if kk<8 else 9} offset:{((kk&7)*8+et)*1024}")
    for kk in range(15): xloads(kk)
    def body(swap):
        wreads(0)
        for kk in range(16):
            if kk == 1: xloads(15)
            a(f"s_waitcnt vmcnt({4*(14-kk) if kk == 0 else 4*(15-kk)})")
            if kk == 0: a.tl1(5)
            if kk < 15:
                wreads(kk+1)
                a("s_waitcnt lgkmcnt(8)")
            else:
                a("s_waitcnt lgkmcnt(0)")
            for tt in range(4):
                for et in range(8):
                    acc = ar((tt*8+et)*4, 4)
                    c = "0" if kk == 0 else acc
                    W = vr(WB[kk&1]+et*4, 4); X = xreg(kk, tt)
                    if swap:
                        a(f"v_mfma_f32_16x16x32_bf16 {acc}, {X}, {W}, {c}")
                    else:
                        a(f"v_mfma_f32_16x16x32_bf16 {acc}, {W}, {X}, {c}")
        a("s_nop 15")
        a.tl1(6)
        for i in range(128):
            a(f"v_accvgpr_read_b32 v{ACC+i}, a{i}")
    ACC = 16
    a("s_cmp_eq_u32 s13, 2")
    a(f"s_cbranch_scc1 {pre}_V")
    body(False)
    a("s_lshl_b32 s15, s13, 24")
    a(f"s_add_u32 s15, s15, {OFF_QF}")
    a("s_lshl_b32 s16, s12, %d" % (14 if HS_LAYOUT else 19))
    a("s_add_u32 s15, s15, s16")
    a("s_lshl_b32 s16, s14, %d" % KV_HSH)
    a("s_add_u32 s15, s15, s16")
    a("s_add_u32 s20, s4, s15"); a("s_addc_u32 s21, s5, 0")
    for tt in range(4):
        sgo = (tt >> 1) * KV_SST + (tt & 1) * 1024
        a(f"v_add_u32 v4, {sgo}, v3")
        a(f"v_add_u32 v5, {sgo+4096}, v3")
        for w in range(4):
            t0 = ACC + (tt*8+2*w)*4; t1 = t0 + 4
            d = 144 + w*4
            a(f"v_cvt_pk_bf16_f32 v{d}, v{t0}, v{t0+1}")
            a(f"v_cvt_pk_bf16_f32 v{d+1}, v{t0+2}, v{t0+3}")
            a(f"v_cvt_pk_bf16_f32 v{d+2}, v{t1}, v{t1+1}")
            a(f"v_cvt_pk_bf16_f32 v{d+3}, v{t1+2}, v{t1+3}")
            a(f"global_store_dwordx4 v{4 if w<2 else 5}, {vr(d,4)}, s[20:21] offset:{(w&1)*2048}{sc}")
        a("s_nop 1")
    a(f"s_branch {endl}")
    a.label(f"{pre}_V")
    body(True)
    a("s_lshl_b32 s16, s12, %d" % (14 if HS_LAYOUT else 19))
    a(f"s_add_u32 s15, s16, {OFF_VF}")
    a("s_lshl_b32 s16, s14, %d" % KV_HSH)
    a("s_add_u32 s15, s15, s16")
    a("s_add_u32 s20, s4, s15"); a("s_addc_u32 s21, s5, 0")
    for sg in range(2):
        a(f"v_add_u32 v4, {sg*KV_SST}, v3")
        a(f"v_add_u32 v5, {sg*KV_SST+4096}, v3")
        for et in range(8):
            t0 = ACC + ((2*sg)*8+et)*4; t1 = ACC + ((2*sg+1)*8+et)*4
            d = 144 + (et&3)*4
            a(f"v_cvt_pk_bf16_f32 v{d}, v{t0}, v{t0+1}")
            a(f"v_cvt_pk_bf16_f32 v{d+1}, v{t0+2}, v{t0+3}")
            a(f"v_cvt_pk_bf16_f32 v{d+2}, v{t1}, v{t1+1}")
            a(f"v_cvt_pk_bf16_f32 v{d+3}, v{t1+2}, v{t1+3}")
            a(f"global_store_dwordx4 v{4 if et<4 else 5}, {vr(d,4)}, s[20:21] offset:{(et&3)*1024}{sc}")
            if et == 3: a("s_nop 1")
        a("s_nop 1")
```

```python
from common import *
from sched import LdsSB
import os
LDS_MEMS = 0
LDS_VL = 8192
LDS_WO = 16384
LDS_SC = LDS_WO + 131072
LDS_PB = LDS_SC + 9216
LDS_OX = LDS_PB + 2048
CHAIN_LDS = LDS_OX + 4096

SCALE = 0x3db504f3
LOG2E = 0x3fb8aa3b
KX, VX = 96, 104
PROF = int(os.environ.get("PROF", "0"))
DBGMEM = int(os.environ.get("DBGMEM", "0"))
TL = int(os.environ.get("TL", "0"))
def tl(a, i):
    if TL:
        a(f"s_memrealtime s[{80+2*i}:{81+2*i}]")
        a("s_waitcnt lgkmcnt(0)")

OFF_MEMH = OFF_MEM + 65536
WARM = 1
PRING = int(os.environ.get("PRING", "1"))
KVNT = " nt" if int(os.environ.get("KVNT", "0")) else ""
VEARLY = int(os.environ.get("VEARLY", "1"))
E_NONCE = int(os.environ.get("E_NONCE", "24")); E_CHK = int(os.environ.get("E_CHK", "56")); E_EVAL = int(os.environ.get("E_EVAL", "61"))

def stamp(a, i):
    if not PROF: return
    if int(os.environ.get("LATM", "0")) == 2 and i >= 5: return
    a("s_memrealtime s[40:41]" if PROF == 2 else "s_memtime s[40:41]")
    a("s_waitcnt lgkmcnt(0)")
    a("s_sub_u32 s43, s40, s42")
    a(f"s_add_u32 s{50+i}, s{50+i}, s43")
    a("s_mov_b32 s42, s40")
    if PROF == 2:
        a("s_cmp_eq_u32 s7, 30")
        a(f"s_cselect_b32 s{60+i}, s40, s{60+i}")

FUSED = False
def kvflag_poll(a, lab, t=112):
    a(f"v_and_b32 v{t}, 15, v2")
    a(f"v_lshlrev_b32 v{t}, 2, v{t}")
    a(f"v_add_u32 v{t}, s34, v{t}")
    a.label(lab)
    a(f"global_load_dword v{t+1}, v{t}, s[4:5] sc1")
    a("s_waitcnt vmcnt(0)")
    a(f"v_cmp_ne_u32 vcc, s{CNONCE}, v{t+1}")
    a("s_and_b32 s25, vcc_lo, 0x6666")
    a(f"s_cbranch_scc1 {lab}")
    a("s_add_u32 s34, s34, 64")
def mflag_store(a, t=112):
    a(f"v_mov_b32 v{t}, s35")
    a(f"v_mov_b32 v{t+1}, s{CNONCE}")
    a("s_mov_b64 exec, 1")
    a(f"global_store_dword v{t}, v{t+1}, s[4:5] sc1")
    a("s_mov_b64 exec, -1")
    a("s_add_u32 s35, s35, 512")

def gen_chain(a, fused=False):
    global FUSED
    FUSED = fused
    name = "main_kernel" if fused else "chain_kernel"
    a.begin(name)
    a("s_cmp_ge_u32 s2, 256")
    a("s_cbranch_scc1 CH_END")
    a("s_and_b32 s3, s2, 7")
    a("s_cmp_lg_u32 s3, 0")
    a("s_cbranch_scc1 " + ("WK_START" if fused else "CH_END"))
    a("s_lshr_b32 s6, s2, 3")
    tl(a, 0)
    load_ptr(a, 4, "ws")
    load_ptr(a, 8, "mem0")
    load_ptr(a, 28, "dbg")
    a("v_lshrrev_b32 v1, 6, v0")
    a("v_and_b32 v2, 63, v0")
    a("s_nop 0")
    a("v_readfirstlane_b32 s3, v1")
    a("v_lshlrev_b32 v3, 4, v2")
    a("s_getreg_b32 s24, hwreg(HW_REG_XCC_ID)")
    a("s_and_b32 s24, s24, 15")
    a("s_add_u32 s24, s24, 1")
    a("s_memrealtime s[30:31]")
    a("s_waitcnt lgkmcnt(0)")
    V = VmSB(a)
    a(f"s_or_b32 s{CNONCE}, s30, 1")
    a("s_lshl_b32 s25, s6, 2"); a("s_add_u32 s25, s25, s3")
    a("s_lshl_b32 s26, s25, 2"); a(f"s_add_u32 s26, s26, {4*MB+196608}")
    a("s_add_u32 s30, s4, s26"); a("s_addc_u32 s31, s5, 0")
    a("s_add_u32 s36, s28, 128"); a("s_addc_u32 s37, s29, 0")
    a("s_cmp_eq_u32 s25, 0")
    a("s_cselect_b32 s30, s36, s30"); a("s_cselect_b32 s31, s37, s31")
    a("v_mov_b32 v4, 0")
    a(f"v_mov_b32 v5, s{CNONCE}")
    a("s_mov_b64 exec, 1")
    V.issue("global_store_dword v4, v5, s[30:31] sc0 sc1", "st")
    a("s_mov_b64 exec, -1")
    a("s_mov_b32 s49, s25")
    a("v_mov_b32 v4, s49"); a("v_mov_b32 v5, s24")
    a("s_mov_b64 exec, 1")
    V.issue("global_store_byte v4, v5, s[28:29] sc0 sc1", "st")
    a("s_mov_b64 exec, -1")
    for i, nm in enumerate(("Wq", "Wk", "Wv", "Wo")):
        load_ptr(a, 12+2*i, nm)
    SEL = 8
    gen_selB(a, SEL, "v2", 16)
    a("v_bfe_u32 v16, v2, 2, 2")
    a("v_lshlrev_b32 v16, 3, v16")
    a("v_and_b32 v17, 3, v2")
    a("v_add_u32 v16, v16, v17")
    a("v_lshlrev_b32 v16, 13, v16")
    a("v_lshrrev_b32 v17, 4, v2")
    a("v_lshlrev_b32 v17, 4, v17")
    a("v_add_u32 v4, v16, v17")
    a("v_add_u32 v5, 32768, v4")
    a("v_and_b32 v16, 15, v2")
    a("v_lshlrev_b32 v16, 10, v16")
    a("v_add_u32 v6, v16, v17")
    a("v_add_u32 v7, 16384, v6")
    a("s_waitcnt lgkmcnt(0)")
    a("s_lshl_b32 s25, s6, 8"); a("s_lshl_b32 s26, s3, 6"); a("s_add_u32 s25, s25, s26")
    for i in range(3):
        a(f"s_add_u32 s{12+2*i}, s{12+2*i}, s25"); a(f"s_addc_u32 s{13+2*i}, s{13+2*i}, 0")
    a("s_lshl_b32 s25, s6, 17"); a("s_lshl_b32 s26, s3, 15"); a("s_add_u32 s25, s25, s26")
    a("s_add_u32 s18, s18, s25"); a("s_addc_u32 s19, s19, 0")
    a("v_add_u32 v1, s26, v3")
    a(f"v_add_u32 v1, {LDS_WO}, v1")
    a("s_lshl_b32 s26, s3, 11"); a(f"s_add_u32 s26, s26, {LDS_VL}"); a("s_mov_b32 m0, s26")
    DT = [96, 112]
    def fidx(kk, t): return (((kk>>1)*2+t)*2+(kk&1))*4
    def wreg(m, kk, t):
        i = fidx(kk, t)
        return ar(i,4) if m == 0 else (ar(128+i,4) if m == 1 else vr(128+i,4))
    items = []
    def ld_wo(cp):
        b = 16 + (cp & 7)*8
        V.issue(f"global_load_dwordx4 {vr(b,4)}, v6, s[18:19] offset:{cp*64}", ("o", cp))
        V.issue(f"global_load_dwordx4 {vr(b+4,4)}, v7, s[18:19] offset:{cp*64}", ("o", cp))
    def ld_w(m, kk):
        V.issue(f"global_load_dwordx4 {wreg(m,kk,0)}, v4, s[{12+2*m}:{13+2*m}]", (m, kk))
        V.issue(f"global_load_dwordx4 {wreg(m,kk,1)}, v5, s[{12+2*m}:{13+2*m}]", (m, kk))
        a(f"s_add_u32 s{12+2*m}, s{12+2*m}, 262144"); a(f"s_addc_u32 s{13+2*m}, s{13+2*m}, 0")
    wq = [(m, kk) for m in range(3) for kk in range(16)]
    wpos = [0]
    def fill(limit=60):
        while wpos[0] < len(wq) and V.n() + 2 <= limit:
            ld_w(*wq[wpos[0]]); wpos[0] += 1
    for cp in range(8): ld_wo(cp)
    fill()
    units = [("o", cp) for cp in range(16)] + wq
    pend = None
    def finish(u, D):
        if u[0] == "o":
            cp = u[1]
            tr_pack(a, D, 80, 84)
            a(f"ds_write_b128 v1, v[80:83] offset:{(2*cp)*1024}")
            a(f"ds_write_b128 v1, v[84:87] offset:{(2*cp+1)*1024}")
        else:
            m, kk = u
            if m == 2:
                tr_pack(a, D, 128+fidx(kk,0), 128+fidx(kk,1))
            else:
                tr_pack(a, D, 88, 92)
                a("s_nop 0")
                for t in range(2):
                    for r in range(4):
                        a(f"v_accvgpr_write_b32 a{128*m+fidx(kk,t)+r}, v{88+4*t+r}")
    a("s_lshl_b32 s25, s6, %d" % KV_HSH); a("s_lshl_b32 s26, s3, 11"); a("s_add_u32 s25, s25, s26")
    a(f"s_add_u32 s26, s25, {OFF_KF}")
    a("s_add_u32 s72, s4, s26"); a("s_addc_u32 s73, s5, 0")
    a(f"s_add_u32 s26, s25, {OFF_VF}")
    a("s_add_u32 s74, s4, s26"); a("s_addc_u32 s75, s5, 0")
    a("s_lshl_b32 s34, s6, 9")
    a(f"s_add_u32 s34, s34, {F_QKV}")
    U_NONCE, U_CHK, U_EVAL = E_NONCE, E_CHK, E_EVAL
    def dts(i): return DT[i & 1] if i < 18 else DT[i & 1] - 64
    for i, u in enumerate(units):
        V.wait(u)
        D = dts(i)
        if u[0] == "o":
            b = 16 + (u[1] & 7)*8
            tr_unit(a, vr(b,4), vr(b+4,4), D, SEL)
        else:
            tr_unit(a, wreg(u[0],u[1],0), wreg(u[0],u[1],1), D, SEL)
        if pend is not None: finish(pend, dts(i-1))
        if u[0] == "o" and u[1] < 8: ld_wo(u[1] + 8)
        if i == U_NONCE:
            a("v_mov_b32 v64, 128")
            V.issue("global_load_dword v65, v64, s[28:29] sc0 sc1", "nonce")
        if i == U_CHK:
            V.wait("nonce")
            a(f"v_readfirstlane_b32 s{CNONCE}, v65")
            a("v_and_b32 v64, 31, v2"); a("v_lshlrev_b32 v64, 2, v64")
            V.issue("global_load_dword v66, v64, s[28:29] sc0 sc1", "chk")
            a("v_and_b32 v67, 15, v2"); a("v_lshlrev_b32 v67, 2, v67"); a("v_add_u32 v67, s34, v67")
            V.issue("global_load_dword v68, v67, s[4:5] sc1", "chk")
            a("v_min_u32 v67, 47, v2"); a("v_lshlrev_b32 v67, 3, v67"); a(f"v_add_u32 v67, {F_INIT}, v67")
            V.issue("global_load_dwordx2 v[70:71], v67, s[4:5] sc1", "chk")
        if i == U_EVAL:
            V.wait("chk")
            a("s_mul_i32 s25, s24, 0x01010101")
            a("v_cmp_ne_u32 vcc, s25, v66")
            a("s_or_b32 s47, vcc_lo, vcc_hi")
            a(f"v_cmp_ne_u32 vcc, s{CNONCE}, v68")
            a("s_and_b32 s25, vcc_lo, 0x6666")
            a("s_or_b32 s47, s47, s25")
            a(f"v_xor_b32 v70, s{CNONCE}, v70"); a(f"v_xor_b32 v71, s{CNONCE}, v71"); a("v_or_b32 v70, v70, v71")
            a("v_cmp_ne_u32 vcc, 0, v70")
            a("s_or_b32 s47, s47, vcc_lo"); a("s_or_b32 s47, s47, vcc_hi")
            a(f"s_cmp_eq_u32 s{CNONCE}, 0")
            a("s_cselect_b32 s47, 1, s47")
            V.issue(f"global_load_dwordx4 {vr(KX,4)}, v3, s[72:73] sc1", "kv")
            V.issue(f"global_load_dwordx4 {vr(KX+4,4)}, v3, s[72:73] offset:1024 sc1", "kv")
            V.issue(f"global_load_lds_dwordx4 v3, s[74:75] sc1", "kv")
            V.issue(f"global_load_lds_dwordx4 v3, s[74:75] offset:1024 sc1", "kv")
        fill()
        pend = u
    a("s_nop 7")
    finish(pend, dts(len(units)-1))
    tl(a, 1)
    a("s_mov_b32 s20, 0x00ff00ff"); a("s_mov_b32 s21, 0x00ff00ff")
    a("s_mov_b32 s22, 0x0ffc0ffc"); a("s_mov_b32 s23, 0x0ffc0ffc")
    a("s_mov_b32 s32, 0x0ffc0ffc"); a("s_mov_b32 s33, 0")
    a("s_mov_b32 s44, 0xff00ff00"); a("s_mov_b32 s45, 0xff00ff00")
    a("s_lshl_b32 s25, s3, 11")
    a("v_add_u32 v4, s25, v3")
    a(f"s_add_u32 s25, s25, {LDS_MEMS}")
    a("v_add_u32 v5, s25, v3")
    a(f"v_add_u32 v6, {LDS_MEMS}, v3")
    a("v_lshrrev_b32 v7, 4, v2")
    a("v_mul_u32_u24 v7, 144, v7")
    a("v_and_b32 v8, 15, v2")
    a("v_lshlrev_b32 v8, 4, v8")
    a("v_add_u32 v7, v7, v8")
    a("s_mul_i32 s25, s3, 2304")
    a(f"s_add_u32 s25, s25, {LDS_SC}")
    a("v_add_u32 v7, s25, v7")
    a("v_bfe_u32 v16, v2, 2, 2")
    a("v_and_b32 v17, 3, v2")
    a("v_bfe_u32 v18, v2, 4, 1")
    a("s_lshl_b32 s25, s3, 1")
    a("v_add_u32 v18, s25, v18")
    a("v_cmp_eq_u32 vcc, 3, v16")
    a("s_nop 1")
    a("v_cndmask_b32 v19, v16, 0, vcc")
    a("v_mul_u32_u24 v19, 576, v19")
    a("v_mul_u32_u24 v20, 144, v17")
    a("v_add_u32 v19, v19, v20")
    a("v_lshlrev_b32 v20, 4, v18")
    a("v_add_u32 v19, v19, v20")
    a(f"v_add_u32 v8, {LDS_SC}, v19")
    a("v_add_u32 v19, -1, v16")
    a("v_lshlrev_b32 v19, 3, v19")
    a("v_and_b32 v19, 31, v19")
    a("v_lshlrev_b32 v20, 5, v17")
    a("v_add_u32 v19, v19, v20")
    a("v_and_b32 v20, 1, v17")
    a("v_lshlrev_b32 v20, 3, v20")
    a("v_add_u32 v20, 128, v20")
    a("v_cmp_eq_u32 vcc, 0, v16")
    a("s_nop 1")
    a("v_cndmask_b32 v19, v19, v20, vcc")
    a("v_mul_u32_u24 v20, 144, v18")
    a("v_add_u32 v19, v19, v20")
    a(f"v_add_u32 v0, {LDS_PB}, v19")
    a("v_and_b32 v19, 7, v2")
    a("v_mul_u32_u24 v19, 144, v19")
    a("v_lshrrev_b32 v20, 4, v2")
    a("v_lshlrev_b32 v20, 5, v20")
    a("v_add_u32 v19, v19, v20")
    a(f"v_add_u32 v15, {LDS_PB}, v19")
    a("v_and_b32 v19, 7, v2")
    a("v_mul_u32_u24 v19, 144, v19")
    a("v_lshrrev_b32 v20, 4, v2")
    a("v_lshlrev_b32 v20, 2, v20")
    a("v_add_u32 v19, v19, v20")
    a(f"v_add_u32 v77, {LDS_PB+128}, v19")
    a("v_lshrrev_b32 v19, 5, v2")
    a("v_lshlrev_b32 v19, 8, v19")
    a("v_and_b32 v20, 7, v2")
    a("v_lshlrev_b32 v20, 5, v20")
    a("v_add_u32 v19, v19, v20")
    a("v_bfe_u32 v20, v2, 4, 1")
    a("v_lshlrev_b32 v20, 3, v20")
    a("v_add_u32 v19, v19, v20")
    a("s_lshl_b32 s25, s3, 9")
    a(f"s_add_u32 s25, s25, {LDS_OX}")
    a("v_add_u32 v9, s25, v19")
    a("v_bfe_u32 v21, v2, 2, 2")
    a("v_lshlrev_b32 v21, 1, v21")
    a("v_and_b32 v20, 1, v2")
    a("v_add_u32 v21, v21, v20")
    a("v_bfe_u32 v22, v2, 1, 1")
    a("v_lshrrev_b32 v19, 5, v2")
    a("v_lshlrev_b32 v19, 9, v19")
    a("v_bfe_u32 v20, v2, 4, 1")
    a("v_lshlrev_b32 v20, 8, v20")
    a("v_add_u32 v19, v19, v20")
    a("v_lshlrev_b32 v20, 5, v21")
    a("v_add_u32 v19, v19, v20")
    a("v_lshlrev_b32 v20, 4, v22")
    a("v_add_u32 v19, v19, v20")
    a(f"v_add_u32 v10, {LDS_OX}, v19")
    a("v_mov_b32 v74, 0x44444444")
    a("v_mov_b32 v20, 0xeeeeeeee")
    a("v_cmp_eq_u32 vcc, 1, v22")
    a("s_nop 1")
    a("v_cndmask_b32 v74, v74, v20, vcc")
    a("v_bfe_u32 v19, v2, 1, 2")
    a("v_lshrrev_b32 v20, 4, v2")
    a("v_and_b32 v23, 1, v2")
    a("v_lshlrev_b32 v23, 4, v23")
    a("v_mov_b32 v24, 0x3f80")
    a("v_lshlrev_b32 v24, v23, v24")
    a("v_cmp_eq_u32 vcc, v19, v20")
    a("s_nop 1")
    a("v_cndmask_b32 v24, 0, v24, vcc")
    a("v_bfe_u32 v19, v2, 3, 1")
    a("v_cmp_eq_u32 vcc, 0, v19")
    a("s_nop 1")
    a("v_cndmask_b32 v72, 0, v24, vcc")
    a("v_cndmask_b32 v73, v24, 0, vcc")
    a("v_lshrrev_b32 v19, 4, v2")
    a("v_lshlrev_b32 v19, 8, v19")
    a("v_and_b32 v20, 7, v2")
    a("v_lshlrev_b32 v20, 4, v20")
    a("v_add_u32 v75, v19, v20")
    a("v_lshrrev_b32 v19, 5, v2")
    a("v_lshlrev_b32 v19, 7, v19")
    a("v_and_b32 v20, 15, v2")
    a("v_lshlrev_b32 v20, 3, v20")
    a("v_add_u32 v19, v19, v20")
    a("v_bfe_u32 v20, v2, 4, 1")
    a("v_lshlrev_b32 v20, 2, v20")
    a("v_add_u32 v76, v19, v20")
    a("s_lshl_b32 s25, s3, 13")
    a(f"s_add_u32 s25, s25, {LDS_WO}")
    a("v_add_u32 v11, s25, v3")
    a("v_add_u32 v1, 65536, v11")
    a("v_lshrrev_b32 v12, 3, v2")
    a("v_lshlrev_b32 v12, 14, v12")
    a("v_and_b32 v13, 7, v2")
    a("v_lshlrev_b32 v13, 4, v13")
    a("v_add_u32 v12, v12, v13")
    a("s_lshl_b32 s25, s6, 7")
    a("s_lshl_b32 s26, s3, 17")
    a("s_add_u32 s25, s25, s26")
    a("v_add_u32 v12, s25, v12")
    a("s_lshl_b32 s25, s6, 14")
    a("s_lshl_b32 s26, s3, 12")
    a("s_add_u32 s25, s25, s26")
    a("v_add_u32 v13, s25, v3")
    a("v_lshrrev_b32 v14, 5, v2")
    a("v_lshlrev_b32 v14, 8, v14")
    a("v_bfe_u32 v16, v2, 1, 1")
    a("v_lshlrev_b32 v16, 5, v16")
    a("v_add_u32 v14, v14, v16")
    a("v_bfe_u32 v16, v2, 4, 1")
    a("v_lshlrev_b32 v16, 4, v16")
    a("v_add_u32 v14, v14, v16")
    a("v_bfe_u32 v16, v2, 2, 1")
    a("v_lshlrev_b32 v16, 2, v16")
    a("v_add_u32 v14, v14, v16")
    a("s_lshr_b32 s25, s6, 3")
    a("s_lshl_b32 s25, s25, 11")
    a("s_lshl_b32 s26, s3, 9")
    a("s_add_u32 s25, s25, s26")
    a("s_bfe_u32 s26, s6, 0x20001")
    a("s_lshl_b32 s26, s26, 6")
    a("s_add_u32 s25, s25, s26")
    a("s_and_b32 s26, s6, 1")
    a("s_lshl_b32 s26, s26, 3")
    a("s_add_u32 s25, s25, s26")
    a("v_add_u32 v14, s25, v14")
    a("v_lshlrev_b32 v78, 10, v21")
    a("v_lshrrev_b32 v19, 4, v2")
    a("v_lshlrev_b32 v19, 5, v19")
    a("v_add_u32 v78, v78, v19")
    a("v_lshlrev_b32 v19, 2, v22")
    a("v_add_u32 v78, v78, v19")
    a("s_lshl_b32 s25, s3, 8")
    a("v_add_u32 v78, s25, v78")
    a("v_and_b32 v79, 31, v2")
    a("v_lshlrev_b32 v79, 6, v79")
    a("v_lshrrev_b32 v19, 5, v2")
    a(f"v_mul_u32_u24 v19, {(OFF_VF-OFF_KF)>>8}, v19")
    a("v_lshlrev_b32 v19, 8, v19")
    a("v_add_u32 v79, v79, v19")
    a("s_lshl_b32 s25, s6, %d" % KV_HSH); a("s_lshl_b32 s26, s3, 11"); a("s_add_u32 s25, s25, s26")
    a(f"s_add_u32 s25, s25, {OFF_KF + KV_SST}")
    a("v_add_u32 v79, s25, v79")
    a("s_mov_b32 s38, 0x00550055"); a("s_mov_b32 s39, 0x00550055")
    a("s_lshl_b32 s25, s6, %d" % KV_HSH)
    a("s_lshl_b32 s26, s3, 11")
    a("s_add_u32 s25, s25, s26")
    a(f"s_add_u32 s26, s25, {OFF_KF}")
    a("s_add_u32 s12, s4, s26"); a("s_addc_u32 s13, s5, 0")
    a(f"s_add_u32 s26, s25, {OFF_VF}")
    a("s_add_u32 s14, s4, s26"); a("s_addc_u32 s15, s5, 0")
    a("s_lshl_b32 s25, s6, %d" % KM_HSH)
    a("s_lshl_b32 s26, s3, 10")
    a("s_add_u32 s25, s25, s26")
    a(f"s_add_u32 s26, s25, {OFF_KMF}")
    a("s_add_u32 s16, s4, s26"); a("s_addc_u32 s17, s5, 0")
    a(f"s_add_u32 s26, s25, {OFF_VMF}")
    a("s_add_u32 s18, s4, s26"); a("s_addc_u32 s19, s5, 0")
    add64_imm(a, 26, 4, OFF_MEM + 8192)
    q = " sc1" if fused else ""
    def pf_k(q=q):
        a(f"global_load_dwordx4 {vr(KX,4)}, v3, s[12:13]{q}")
        a(f"global_load_dwordx4 {vr(KX+4,4)}, v3, s[12:13] offset:1024{q}")
        if not int(os.environ.get("KVSAME", "0")): a(f"s_add_u32 s12, s12, {KV_SST}"); a(f"s_addc_u32 s13, s13, 0")
    def pf_v(q=q):
        a(f"global_load_lds_dwordx4 v3, s[14:15]{q}")
        a(f"global_load_lds_dwordx4 v3, s[14:15] offset:1024{q}")
        if not int(os.environ.get("KVSAME", "0")): a(f"s_add_u32 s14, s14, {KV_SST}"); a(f"s_addc_u32 s15, s15, 0")
    a("s_lshl_b32 s35, s6, 4")
    a("s_lshl_b32 s25, s3, 2")
    a("s_add_u32 s35, s35, s25")
    a(f"s_add_u32 s35, s35, {F_M}")
    a("s_mov_b32 s7, 0")
    if PROF:
        for i in range(10): a(f"s_mov_b32 s{50+i}, 0")
        a("s_mov_b32 s70, 0"); a("s_mov_b32 s71, 0")
        a("s_memtime s[40:41]"); a("s_waitcnt lgkmcnt(0)"); a("s_mov_b32 s42, s40")
    a("s_waitcnt vmcnt(0) lgkmcnt(0)")
    a("s_cmp_lg_u32 s47, 0")
    a("s_cbranch_scc1 CH_SLOWSTART")
    a("s_add_u32 s34, s34, 64")
    a(f"s_add_u32 s12, s12, {KV_SST}"); a(f"s_addc_u32 s13, s13, 0")
    a(f"s_add_u32 s14, s14, {KV_SST}"); a(f"s_addc_u32 s15, s15, 0")
    tl(a, 2)
    a("s_barrier")
    a("s_branch CH_FAST_LOOP")
    a.label("CH_SLOWSTART")
    a("v_mov_b32 v16, 128")
    a.label("CH_NONW")
    a("global_load_dword v17, v16, s[28:29] sc0 sc1")
    a("s_waitcnt vmcnt(0)")
    a(f"v_readfirstlane_b32 s{CNONCE}, v17")
    a(f"s_cmp_eq_u32 s{CNONCE}, 0")
    a("s_cbranch_scc1 CH_NONW")
    a("v_min_u32 v16, 47, v2"); a("v_lshlrev_b32 v16, 3, v16"); a(f"v_add_u32 v16, {F_INIT}, v16")
    a.label("CH_INITW")
    a("global_load_dwordx2 v[18:19], v16, s[4:5] sc1")
    a("s_waitcnt vmcnt(0)")
    a(f"v_xor_b32 v18, s{CNONCE}, v18"); a(f"v_xor_b32 v19, s{CNONCE}, v19"); a("v_or_b32 v18, v18, v19")
    a("v_cmp_ne_u32 vcc, 0, v18")
    a("s_cbranch_vccnz CH_INITW")
    kvflag_poll(a, "CH_KVF0")
    tl(a, 2)
    pf_k(); pf_v()
    a("v_add_u32 v18, 64, v2")
    a.label("CH_MODE")
    a("global_load_ubyte v17, v2, s[28:29] sc0 sc1")
    a("global_load_ubyte v19, v18, s[28:29] sc0 sc1")
    a("s_waitcnt vmcnt(0)")
    a("v_min_u32 v16, v17, v19")
    a("v_cmp_eq_u32 vcc, 0, v16")
    a("s_cbranch_vccnz CH_MODE")
    a("v_cmp_ne_u32 vcc, s24, v17")
    a("s_or_b32 s25, vcc_lo, vcc_hi")
    a("v_cmp_ne_u32 vcc, s24, v19")
    a("s_or_b32 s25, s25, vcc_lo")
    a("s_or_b32 s25, s25, vcc_hi")
    a("s_barrier")
    a("s_cmp_lg_u32 s25, 0")
    a("s_cbranch_scc1 CH_SLOW_LOOP")
    for fast in (True, False):
        gen_loop(a, fast, pf_k, pf_v)
    a.label("CH_FIN")
    if TL:
        tl(a, 3)
        a("s_lshl_b32 s25, s6, 2"); a("s_add_u32 s25, s25, s3"); a("s_lshl_b32 s25, s25, 5")
        a(f"s_add_u32 s25, s25, {4*MB+131072}")
        a("v_mov_b32 v16, s25")
        for i in range(4):
            a(f"v_mov_b32 v17, s{80+2*i}")
            a(f"global_store_dword v16, v17, s[4:5] offset:{4*i}")
    if fused:
        a("s_waitcnt vmcnt(0)")
        mflag_store(a)
    if PROF:
        a("s_lshl_b32 s25, s6, 2"); a("s_add_u32 s25, s25, s3"); a("s_lshl_b32 s25, s25, 6")
        a(f"s_add_u32 s25, s25, {4*MB+131072}")
        a("v_mov_b32 v16, s25")
        for i in range(10):
            a(f"v_mov_b32 v17, s{(60 if PROF==2 else 50)+i}")
            a(f"global_store_dword v16, v17, s[4:5] offset:{4*i}")
        for i in range(2):
            a(f"v_mov_b32 v17, s{70+i}")
            a(f"global_store_dword v16, v17, s[4:5] offset:{40+4*i}")
    if fused:
        a("s_endpgm")
        from k_work import gen_worker
        gen_worker(a)
    a.label("CH_END")
    a.end(name, 512, 256)

def gen_loop(a, fast, pf_k, pf_v):
    tag = "FAST" if fast else "SLOW"
    sc = "" if fast else " sc1"
    MF = 16
    AQ, AK, AV = 48, 56, 64
    T = 112
    IDX = "v74"
    L = LdsSB(a)
    a.label(f"CH_{tag}_LOOP")
    stamp(a, 0)
    if int(os.environ.get("STEPT", "0")):
        a("s_cmp_ge_u32 s7, 16"); a(f"s_cbranch_scc1 CH_{tag}_NST")
        a("s_memrealtime s[40:41]")
        a("s_lshl_b32 s25, s6, 2"); a("s_add_u32 s25, s25, s3"); a("s_lshl_b32 s25, s25, 6")
        a("s_lshl_b32 s43, s7, 2")
        a("s_add_u32 s25, s25, s43")
        a(f"s_add_u32 s25, s25, {4*MB+131072}")
        a("v_mov_b32 v120, s25")
        a("s_waitcnt lgkmcnt(0)")
        a("v_mov_b32 v121, s40")
        a("global_store_dword v120, v121, s[4:5]")
        a.label(f"CH_{tag}_NST")
    a("s_cmp_eq_u32 s7, 0")
    a(f"s_cbranch_scc1 CH_{tag}_FIRST")
    for _ in range(int(os.environ.get("MDELAY", "0"))): a("s_nop 15")
    a.label(f"CH_{tag}_MPOLL")
    if PROF: a("s_add_u32 s71, s71, 1")
    a("global_load_dwordx4 v[112:115], v4, s[8:9] sc1")
    a("global_load_dwordx4 v[116:119], v4, s[8:9] offset:1024 sc1")
    for i in range(12): a(f"v_mov_b64 {vr(AQ+2*i,2)}, 0")
    a("s_waitcnt vmcnt(0)")
    a("v_max3_u32 v120, v112, v113, v114")
    a("v_max3_u32 v121, v115, v116, v117")
    a("v_max3_u32 v120, v120, v118, v119")
    a("v_max_u32 v120, v120, v121")
    a("v_cmp_eq_u32 vcc, -1, v120")
    a(f"s_cbranch_vccnz CH_{tag}_MPOLL")
    a(f"s_branch CH_{tag}_GOT")
    a.label(f"CH_{tag}_FIRST")
    for u in range(2):
        for G in range(4):
            a(f"global_load_dword v{112+4*u+G}, v78, s[8:9] offset:{u*128+G*8}")
    a("v_mov_b32 v78, v79")
    a("v_and_b32 v2, 15, v2"); a("v_lshlrev_b32 v2, 2, v2")
    for i in range(12): a(f"v_mov_b64 {vr(AQ+2*i,2)}, 0")
    a("s_waitcnt vmcnt(0)")
    a.label(f"CH_{tag}_GOT")
    stamp(a, 1)
    a("ds_write_b128 v5, v[112:115]")
    a("ds_write_b128 v5, v[116:119] offset:1024")
    a("s_waitcnt lgkmcnt(0)")
    a("s_barrier")
    for i in range(8):
        L.issue(f"ds_read_b128 {vr(MF+4*i,4)}, v6 offset:{i*1024}", ("m", i))
    for t in range(2):
        L.issue(f"ds_read_b128 {vr(VX+4*t,4)}, v5 offset:{LDS_VL - LDS_MEMS + t*1024}", ("v", t))
    stamp(a, 2)
    if FUSED:
        a("s_cmp_eq_u32 s7, 0")
        a(f"s_cbranch_scc1 CH_{tag}_NOMF")
        mflag_store(a, 120)
        a.label(f"CH_{tag}_NOMF")
    if WARM:
        a("s_cmp_ge_u32 s7, 62")
        a(f"s_cbranch_scc1 CH_{tag}_NOWU")
        a("s_and_b32 s25, s7, 7")
        a("s_cmp_lg_u32 s25, 5")
        a(f"s_cbranch_scc1 CH_{tag}_NOWU")
        a("s_add_u32 s48, s4, s34"); a("s_addc_u32 s49, s5, 0")
        a("global_load_dword v79, v2, s[48:49] sc1")
        a.label(f"CH_{tag}_NOWU")
    a("s_add_u32 s25, s7, 3"); a("s_and_b32 s25, s25, 3"); a("s_lshl_b32 s25, s25, 13")
    a(f"s_add_u32 s25, s25, {OFF_MEM}")
    a("s_add_u32 s36, s4, s25"); a("s_addc_u32 s37, s5, 0")
    a("v_mov_b32 v120, -1")
    a("s_mov_b64 exec, s[38:39]")
    a(f"global_store_dword v14, v120, s[36:37]{sc}")
    a("s_mov_b64 exec, -1")
    a(f"s_lshr_b32 s30, s7, {PRING.bit_length()-1}"); a("s_and_b32 s30, s30, 1"); a("s_sub_u32 s31, 0, s30")
    for u in range(8):
        L.wait(("m", u))
        A = vr(MF+4*u, 4)
        for t in range(2):
            a(f"v_smfmac_f32_16x16x64_bf16 {vr(AQ+4*t,4)}, {A}, {ar((u*2+t)*8,8)}, {IDX}")
        for t in range(2):
            a(f"v_smfmac_f32_16x16x64_bf16 {vr(AK+4*t,4)}, {A}, {ar(128+(u*2+t)*8,8)}, {IDX}")
    stamp(a, 3)
    if VEARLY and int(os.environ.get("LATM", "0")) != 2:
        a("s_cmp_eq_u32 s7, 63")
        a(f"s_cbranch_scc1 CH_{tag}_NOPFV")
        L.wait(("v", 1))
        pf_v(KVNT)
        a.label(f"CH_{tag}_NOPFV")
    vstate = {"i": 0}
    def vnext(n):
        for _ in range(n):
            idx = vstate["i"]
            if idx >= 16: return
            u, t = idx >> 1, idx & 1
            a(f"v_smfmac_f32_16x16x64_bf16 {vr(AV+4*t,4)}, {vr(MF+4*u,4)}, {vr(128+(u*2+t)*8,8)}, {IDX}")
            vstate["i"] = idx + 1
    vnext(2)
    a("s_nop 1")
    for t in range(2):
        for e in range(2):
            a(f"v_add_f32 v{AQ+4*t+e}, v{AQ+4*t+e}, v{AQ+4*t+2+e}")
            a(f"v_add_f32 v{AK+4*t+e}, v{AK+4*t+e}, v{AK+4*t+2+e}")
        a(f"v_cvt_pk_bf16_f32 v{80+2*t}, v{AQ+4*t}, v{AQ+4*t+1}")
        a(f"v_cvt_pk_bf16_f32 v{81+2*t}, v{AK+4*t}, v{AK+4*t+1}")
        if t == 0: vnext(1)
    a("s_nop 1")
    a("v_mfma_f32_16x16x16_bf16 v[84:87], v[80:81], v[72:73], 0")
    a("v_mfma_f32_16x16x16_bf16 v[88:91], v[82:83], v[72:73], 0")
    vnext(2)
    a("s_nop 1")
    a("v_cvt_pk_bf16_f32 v92, v84, v85")
    a("v_cvt_pk_bf16_f32 v93, v86, v87")
    a("v_cvt_pk_bf16_f32 v94, v88, v89")
    a("v_cvt_pk_bf16_f32 v95, v90, v91")
    a("s_nop 1")
    a("v_mfma_f32_16x16x32_bf16 v[112:115], v[92:95], v[92:95], 0")
    a(f"v_mfma_f32_16x16x32_bf16 v[116:119], {vr(KX,4)}, v[92:95], 0")
    a(f"v_mfma_f32_16x16x32_bf16 v[120:123], {vr(KX+4,4)}, v[92:95], 0")
    a("s_mov_b64 exec, s[44:45]")
    if not int(os.environ.get("NOPF", "0")) & 4: a("global_store_dwordx4 v75, v[92:95], s[16:17]" + (" sc1" if FUSED else ""))
    a("s_mov_b64 exec, -1")
    vnext(2)
    a("s_mov_b64 exec, s[20:21]")
    L.issue("ds_write_b128 v7, v[112:115]")
    L.issue("ds_write_b128 v7, v[116:119] offset:576")
    L.issue("ds_write_b128 v7, v[120:123] offset:1152")
    a("s_mov_b64 exec, -1")
    a("s_cmp_eq_u32 s7, 63")
    a(f"s_cbranch_scc1 CH_{tag}_NOPFK")
    NOPF = int(os.environ.get("NOPF", "0"))
    LATM = int(os.environ.get("LATM", "0"))
    if LATM == 2:
        a("s_waitcnt vmcnt(0)")
        a("s_memtime s[40:41]"); a("s_waitcnt lgkmcnt(0)"); a("s_mov_b32 s59, s40")
    if not NOPF & 1: pf_k(KVNT)
    if LATM == 2:
        pf_v(KVNT)
        a("s_waitcnt vmcnt(0)")
        a("s_memtime s[40:41]"); a("s_waitcnt lgkmcnt(0)"); a("s_sub_u32 s43, s40, s59")
        a("s_max_u32 s58, s58, s43")
        a("s_add_u32 s57, s57, s43")
        a("s_cmp_gt_u32 s43, 1500"); a("s_addc_u32 s56, s56, 0")
        a("s_cmp_gt_u32 s43, 1000"); a("s_addc_u32 s55, s55, 0")
    if not VEARLY and LATM != 2:
        L.wait(("v", 1))
        if not NOPF & 2: pf_v(KVNT)
    a.label(f"CH_{tag}_NOPFK")
    vnext(2)
    L.waitall()
    a("s_barrier")
    stamp(a, 4)
    for w in range(4):
        L.issue(f"ds_read_b128 {vr(T+4*w,4)}, v8 offset:{w*2304}", ("s", w))
    BUF = [48, 56, 64, 80, 88]
    def wread(x):
        nt, i = x >> 1, x & 1
        b = BUF[x % 5]
        base = "v1" if i else "v11"
        L.issue(f"ds_read_b128 {vr(b,4)}, {base} offset:{nt*1024}", ("w", x))
        L.issue(f"ds_read_b128 {vr(b+4,4)}, {base} offset:{32768+nt*1024}", ("w", x))
    for x in range(2): wread(x)
    vnext(16)
    q = " sc1" if FUSED else ""
    fill = []
    for i in range(4): fill.append(f"v_mov_b64 {vr(MF+2*i,2)}, 0")
    for t in range(2):
        for e in range(2):
            fill.append(f"v_add_f32 v{AV+4*t+e}, v{AV+4*t+e}, v{AV+4*t+2+e}")
    for t in range(2):
        fill.append(f"v_cvt_pk_bf16_f32 v{80+2*t}, v{AV+4*t}, v{AV+4*t+1}")
        fill.append(f"v_mov_b32 v{81+2*t}, 0")
    if int(os.environ.get("NOPF", "0")) & 4:
        fill.append("s_nop 0"); fill.append("s_nop 0")
    else:
        fill.append("global_store_dword v76, v80, s[18:19]" + q)
        fill.append("global_store_dword v76, v82, s[18:19] offset:512" + q)
    for i in range(4, 16): fill.append(f"v_mov_b64 {vr(MF+2*i,2)}, 0")
    L.wait(("s", 3))
    S = T
    t0, t1, tm, tc = 124, 125, 126, 127
    vl = []
    for r in range(4):
        vl.append(f"v_add_f32 v{S+r}, v{S+r}, v{S+4+r}")
        vl.append(f"v_add_f32 v{S+8+r}, v{S+8+r}, v{S+12+r}")
    for r in range(4):
        vl.append(f"v_add_f32 v{S+r}, v{S+r}, v{S+8+r}")
    def rnd():
        vl.append(f"v_cvt_pk_bf16_f32 v{t0}, v{S}, v{S+1}")
        vl.append(f"v_cvt_pk_bf16_f32 v{t1}, v{S+2}, v{S+3}")
        vl.append(f"v_lshlrev_b32 v{S}, 16, v{t0}")
        vl.append(f"v_and_b32 v{S+1}, 0xffff0000, v{t0}")
        vl.append(f"v_lshlrev_b32 v{S+2}, 16, v{t1}")
        vl.append(f"v_and_b32 v{S+3}, 0xffff0000, v{t1}")
    rnd()
    for r in range(4): vl.append(f"v_mul_f32 v{S+r}, 0x{SCALE:08x}, v{S+r}")
    rnd()
    vl.append(f"v_mov_b32 v{tc}, 0xff800000")
    for r in range(4): vl.append(f"v_cndmask_b32 v{S+r}, v{tc}, v{S+r}, s[22:23]")
    vl.append(f"v_max3_f32 v{tm}, v{S}, v{S+1}, v{S+2}")
    vl.append(f"v_max_f32 v{tm}, v{tm}, v{S+3}")
    ctl = ["quad_perm:[1,0,3,2]", "quad_perm:[2,3,0,1]", "row_half_mirror", "row_mirror"]
    for c in ctl:
        vl.append("ZERO2")
        vl.append(f"v_max_f32_dpp v{tm}, v{tm}, v{tm} {c} row_mask:0xf bank_mask:0xf")
    vl.append(f"v_mov_b32 v{tc}, 0x{LOG2E:08x}")
    for r in range(4):
        vl.append(f"v_sub_f32 v{S+r}, v{S+r}, v{tm}")
        vl.append(f"v_mul_f32 v{S+r}, v{tc}, v{S+r}")
        vl.append(f"v_exp_f32 v{S+r}, v{S+r}")
    vl.append("s_nop 0")
    vl.append(f"v_add_f32 v{tm}, v{S}, v{S+1}")
    vl.append(f"v_add_f32 v{tc}, v{S+2}, v{S+3}")
    vl.append(f"v_add_f32 v{tm}, v{tm}, v{tc}")
    for c in ctl:
        vl.append("ZERO2")
        vl.append(f"v_add_f32_dpp v{tm}, v{tm}, v{tm} {c} row_mask:0xf bank_mask:0xf")
    vl.append(f"v_rcp_f32 v{tm}, v{tm}")
    vl.append("s_nop 0")
    for r in range(4): vl.append(f"v_mul_f32 v{S+r}, v{S+r}, v{tm}")
    vl.append(f"v_cvt_pk_bf16_f32 v{t0}, v{S}, v{S+1}")
    vl.append(f"v_cvt_pk_bf16_f32 v{t1}, v{S+2}, v{S+3}")
    for ins in vl:
        if ins == "ZERO2":
            for _ in range(2): a(fill.pop(0))
        else:
            a(ins)
    a("s_mov_b64 exec, s[32:33]")
    L.issue(f"ds_write_b64 v0, v[{t0}:{t1}]")
    a("s_mov_b64 exec, -1")
    wread(2)
    while fill: a(fill.pop(0))
    a(f"s_add_u32 s16, s16, {KM_SST}"); a(f"s_addc_u32 s17, s17, 0")
    a(f"s_add_u32 s18, s18, {KM_SST}"); a(f"s_addc_u32 s19, s19, 0")
    L.waitall()
    a("s_barrier")
    L.issue("ds_read_b128 v[112:115], v15", "px")
    L.issue("ds_read_b32 v116, v77", "pm")
    a("v_mov_b32 v117, 0")
    a("s_cmp_eq_u32 s7, 63")
    a("s_cbranch_scc1 CH_FIN")
    L.wait("px", "pm")
    stamp(a, 5)
    for t in range(2):
        a(f"v_mfma_f32_16x16x32_bf16 {vr(88+4*t,4)}, {vr(VX+4*t,4)}, v[112:115], 0")
    for t in range(2):
        a(f"v_mfma_f32_16x16x16_bf16 {vr(88+4*t,4)}, {vr(80+2*t,2)}, v[116:117], {vr(88+4*t,4)}")
    LATM = int(os.environ.get("LATM", "0"))
    if LATM == 1:
        a("s_waitcnt vmcnt(0)"); stamp(a, 6)
    if LATM == 1:
        a("s_waitcnt vmcnt(0)"); stamp(a, 9)
    a("s_nop 5")
    a("v_cvt_pk_bf16_f32 v120, v88, v89")
    a("v_cvt_pk_bf16_f32 v122, v90, v91")
    a("v_cvt_pk_bf16_f32 v121, v92, v93")
    a("v_cvt_pk_bf16_f32 v123, v94, v95")
    a("s_mov_b64 exec, s[20:21]")
    L.issue("ds_write2_b64 v9, v[120:121], v[122:123] offset0:0 offset1:2")
    a("s_mov_b64 exec, -1")
    for x in range(3, 5): wread(x)
    L.waitall()
    a("s_barrier")
    for i in range(2):
        L.issue(f"ds_read_b128 {vr(T+4*i,4)}, v10 offset:{i*1024}", ("o", i))
    stamp(a, 6)
    WA = MF
    a(f"s_and_b32 s25, s7, {PRING-1}")
    a("s_lshl_b32 s25, s25, 19")
    a(f"s_add_u32 s25, s25, {OFF_P}")
    a("s_add_u32 s10, s4, s25"); a("s_addc_u32 s11, s5, 0")
    def pstore(p):
        A = WA + 8*p; B = A + 4
        a(f"v_add_f32 v{A}, v{A}, v{A+2}")
        a(f"v_add_f32 v{A+1}, v{A+1}, v{A+3}")
        a(f"v_add_f32 v{A+2}, v{B}, v{B+2}")
        a(f"v_add_f32 v{A+3}, v{B+1}, v{B+3}")
        for r in range(4):
            a(f"v_and_or_b32 v{A+r}, v{A+r}, -2, s30")
        if p: a(f"v_add_u32 v{A+4}, {p*4096}, v12")
        a(f"global_store_dwordx4 v{12 if p == 0 else A+4}, {vr(A,4)}, s[10:11]{sc}")
    for x in range(16):
        nt, i = x >> 1, x & 1
        b = BUF[x % 5]
        if x < 2: L.wait(("o", i), ("w", x))
        else: L.wait(("w", x))
        a(f"v_smfmac_f32_16x16x64_bf16 {vr(WA+4*nt,4)}, {vr(T+4*i,4)}, {vr(b,8)}, {IDX}")
        if x + 5 < 16: wread(x + 5)
        if x % 4 == 1 and x >= 4:
            pstore(x//4 - 1)
    a("s_nop 7")
    pstore(3)
    stamp(a, 7)
    for _ in range(int(os.environ.get("PDELAY", "6"))): a("s_nop 15")
    a.label(f"CH_{tag}_PPOLL")
    if PROF: a("s_add_u32 s70, s70, 1")
    for i in range(4):
        a(f"global_load_dwordx4 {vr(16+4*i,4)}, v13, s[10:11] offset:{i*1024} sc1")
    a("s_waitcnt vmcnt(0)")
    for i in range(8): a(f"v_bitop3_b32 v{32+i}, v{16+2*i}, v{17+2*i}, s31 bitop3:0x7e")
    a("v_or3_b32 v32, v32, v33, v34"); a("v_or3_b32 v35, v35, v36, v37"); a("v_or3_b32 v32, v32, v38, v39"); a("v_or_b32 v32, v32, v35")
    a("v_and_b32 v32, 1, v32")
    a("v_cmp_ne_u32 vcc, 0, v32")
    a(f"s_cbranch_vccnz CH_{tag}_PPOLL")
    stamp(a, 8)
    for c in range(4):
        a(f"v_add_f32 v{16+c}, v{16+c}, v{20+c}")
        a(f"v_add_f32 v{24+c}, v{24+c}, v{28+c}")
    for c in range(4):
        a(f"v_add_f32 v{16+c}, v{16+c}, v{24+c}")
    a("s_nop 0")
    a("v_permlane32_swap_b32 v16, v18"); a("v_permlane32_swap_b32 v17, v19")
    a("s_nop 0")
    a("v_add_f32 v16, v16, v18"); a("v_add_f32 v17, v17, v19")
    a("s_nop 1")
    a("v_permlane16_swap_b32 v16, v17")
    a("s_nop 0")
    a("v_add_f32 v16, v16, v17")
    a("s_nop 1")
    a("v_add_f32_dpp v16, v16, v16 row_ror:8 row_mask:0xf bank_mask:0xf")
    a("s_nop 1")
    a("v_mov_b32_dpp v17, v16 quad_perm:[1,1,3,3] row_mask:0xf bank_mask:0xf")
    a("v_cvt_pk_bf16_f32 v16, v16, v17")
    a("v_min_u32 v16, -2, v16")
    a("s_mov_b64 exec, s[38:39]")
    a(f"global_store_dword v14, v16, s[26:27]{sc}")
    if DBGMEM:
        a("s_lshl_b32 s25, s7, 13")
        a(f"s_add_u32 s25, s25, {OFF_MEMH + 8192}")
        a("s_add_u32 s36, s4, s25"); a("s_addc_u32 s37, s5, 0")
        a(f"global_store_dword v14, v16, s[36:37]")
    a("s_mov_b64 exec, -1")
    a("s_and_b32 s25, s7, 7")
    a("s_cmp_lg_u32 s25, 5")
    a(f"s_cbranch_scc1 CH_{tag}_KVOK")
    a("s_cmp_ge_u32 s7, 56")
    a(f"s_cbranch_scc1 CH_{tag}_KVOK")
    a.label(f"CH_{tag}_KVE")
    a(f"v_cmp_ne_u32 vcc, s{CNONCE}, v79")
    a("s_and_b32 s25, vcc_lo, 0x6666")
    a(f"s_cbranch_scc0 CH_{tag}_KVP")
    a("s_add_u32 s48, s4, s34"); a("s_addc_u32 s49, s5, 0")
    a("global_load_dword v79, v2, s[48:49] sc1")
    a("s_waitcnt vmcnt(0)")
    a(f"s_branch CH_{tag}_KVE")
    a.label(f"CH_{tag}_KVP")
    a("s_add_u32 s34, s34, 64")
    a.label(f"CH_{tag}_KVOK")
    a("s_mov_b64 s[8:9], s[26:27]")
    a("s_add_u32 s7, s7, 1")
    a("s_add_u32 s25, s7, 1")
    a("s_and_b32 s25, s25, 3")
    a("s_lshl_b32 s25, s25, 13")
    a(f"s_add_u32 s25, s25, {OFF_MEM}")
    a("s_add_u32 s26, s4, s25"); a("s_addc_u32 s27, s5, 0")
    a(f"s_branch CH_{tag}_LOOP")
```

```python
from common import *
import re, os
OFF_XN2 = OFF_XNF
SELW = 224

def remap(a, off, lo=3):
    def f(m):
        n = int(m.group(1)); return f"v{n+off}" if n >= lo else m.group(0)
    def g(m):
        x, y = int(m.group(1)), int(m.group(2))
        return f"v[{x+off}:{y+off}]" if x >= lo else m.group(0)
    def w(txt):
        txt = re.sub(r"v\[(\d+):(\d+)\]", g, txt)
        txt = re.sub(r"\bv(\d+)\b", f, txt)
        a(txt)
    w.label = a.label
    return w

def ln_row(a, sc):
    for i in range(4):
        a(f"v_lshlrev_b32 v{16+2*i}, 16, v{8+i}")
        a(f"v_and_b32 v{17+2*i}, 0xffff0000, v{8+i}")
        a(f"v_lshlrev_b32 v{24+2*i}, 16, v{12+i}")
        a(f"v_and_b32 v{25+2*i}, 0xffff0000, v{12+i}")
    a("v_add_f32 v32, v16, v17")
    for i in range(2, 8):
        a(f"v_add_f32 v32, v32, v{16+i}")
    wave_reduce(a, 32, 33)
    a("v_mul_f32 v32, 0x3b000000, v32")
    a("v_sub_f32 v34, v16, v32")
    a("v_mul_f32 v35, v34, v34")
    for i in range(1, 8):
        a(f"v_sub_f32 v34, v{16+i}, v32")
        a("v_fmac_f32 v35, v34, v34")
    wave_reduce(a, 35, 33)
    a("v_mul_f32 v35, 0x3b000000, v35")
    round_bf16(a, 35)
    a("v_add_f32 v35, 0x3727c5ac, v35")
    round_bf16(a, 35)
    a("v_sqrt_f32 v35, v35")
    a("s_nop 0")
    round_bf16(a, 35)
    a("v_rcp_f32 v35, v35")
    round_bf16(a, 32)
    for i in range(8):
        a(f"v_sub_f32 v{16+i}, v{16+i}, v32")
    for i in range(4):
        a(f"v_cvt_pk_bf16_f32 v{8+i}, v{16+2*i}, v{17+2*i}")
    for i in range(4):
        a(f"v_lshlrev_b32 v{16+2*i}, 16, v{8+i}")
        a(f"v_and_b32 v{17+2*i}, 0xffff0000, v{8+i}")
    for i in range(8):
        a(f"v_mul_f32 v{16+i}, v{16+i}, v35")
    for i in range(4):
        a(f"v_cvt_pk_bf16_f32 v{8+i}, v{16+2*i}, v{17+2*i}")
    for i in range(4):
        a(f"v_lshlrev_b32 v{16+2*i}, 16, v{8+i}")
        a(f"v_and_b32 v{17+2*i}, 0xffff0000, v{8+i}")
    a("v_mul_f32 v36, v16, v24")
    for i in range(1, 8):
        a(f"v_fmac_f32 v36, v{16+i}, v{24+i}")
    wave_reduce(a, 36, 33)
    round_bf16(a, 36)
    a(f"v_add_u32 v5, {OFF_XN}, v4")
    a("global_store_dwordx4 v5, v[8:11], s[4:5]" + sc)
    a("ds_write_b128 v37, v[8:11]")
    a("s_lshl_b32 s12, s10, 2")
    a(f"s_add_u32 s12, s12, {OFF_R}")
    a("v_mov_b32 v5, s12")
    a("s_mov_b64 exec, 1")
    a("global_store_dword v5, v36, s[4:5]" + sc)
    a("s_mov_b64 exec, -1")

NPRE = 16
TB = 131072
def pre_loads(a):
    load_ptr(a, 8, "x"); load_ptr(a, 50, "wr")
    a("s_lshl_b32 s52, s40, 4"); a("s_lshl_b32 s10, s3, 2"); a("s_add_u32 s52, s52, s10")
    a("v_lshlrev_b32 v192, 4, v2")
    a("s_lshl_b32 s10, s52, 10")
    a("v_add_u32 v193, s10, v192")
    a("s_waitcnt lgkmcnt(0)")
    a("s_cmp_ge_u32 s40, 128")
    a("s_cbranch_scc1 PRE_NOLD")
    a("global_load_dwordx4 v[212:215], v192, s[50:51]")
    for r in range(4):
        a(f"global_load_dwordx4 {vr(196+4*r,4)}, v193, s[8:9] offset:{1024*r}")
    a.label("PRE_NOLD")

def pre_init(a):
    sc = " sc1"
    a("s_sub_u32 s52, s40, 128"); a("s_lshl_b32 s52, s52, 2"); a("s_add_u32 s52, s52, s3")
    a("v_mov_b32 v212, -1"); a("v_mov_b32 v213, -1"); a("v_mov_b32 v214, -1"); a("v_mov_b32 v215, -1")
    PRING = int(os.environ.get("PRING", "1"))
    nrow = 512*PRING
    nit = (nrow + 383)//384
    for i in range(nit):
        a(f"s_add_u32 s10, s52, {384*i}")
        if i == nit-1:
            a(f"s_cmp_ge_u32 s10, {nrow}"); a("s_cbranch_scc1 PRE_NOP2")
        a("s_lshl_b32 s10, s10, 10")
        a(f"s_add_u32 s10, s10, {OFF_P}")
        a("v_add_u32 v216, s10, v192")
        a("global_store_dwordx4 v216, v[212:215], s[4:5]" + sc)
    a.label("PRE_NOP2")
    a("s_cmp_ge_u32 s52, 32"); a("s_cbranch_scc1 PRE_NOMEM")
    a("s_lshl_b32 s10, s52, 10"); a(f"s_add_u32 s10, s10, {OFF_MEM}")
    a("v_add_u32 v216, s10, v192")
    a("global_store_dwordx4 v216, v[212:215], s[4:5]" + sc)
    a.label("PRE_NOMEM")

def pre_block(a):
    sc = " sc1"
    b = remap(a, 144)
    a("v_lshrrev_b32 v181, 2, v2")
    a("v_lshlrev_b32 v181, 10, v181")
    a("v_and_b32 v182, 3, v2")
    a("v_lshlrev_b32 v182, 8, v182")
    a("v_add_u32 v181, v181, v182")
    a("s_lshl_b32 s10, s3, 6")
    a(f"s_add_u32 s10, s10, {TB}")
    a("v_add_u32 v181, s10, v181")
    for r in range(4):
        a(f"s_add_u32 s10, s52, {r}")
        if r == 0: a(f"s_waitcnt vmcnt({NPRE})")
        for i in range(4):
            a(f"v_mov_b32 v{152+i}, v{196+4*r+i}")
            a(f"v_mov_b32 v{156+i}, v{212+i}")
        a(f"v_add_u32 v148, {1024*r}, v193")
        if r: a("v_add_u32 v181, 16, v181")
        ln_row(b, sc)
    a("s_waitcnt lgkmcnt(0)")
    a("s_barrier")
    a("s_lshl_b32 s10, s3, 12")
    a("v_add_u32 v181, s10, v192")
    a(f"v_add_u32 v182, {TB}, v181")
    for i in range(4):
        a(f"ds_read_b128 {vr(196+4*i,4)}, v182 offset:{1024*i}")
    a("s_lshl_b32 s10, s40, 14")
    a(f"s_add_u32 s10, s10, {OFF_XNF}")
    a("v_add_u32 v181, s10, v181")
    for i in range(4):
        a(f"s_waitcnt lgkmcnt({3-i})")
        a(f"global_store_dwordx4 v181, {vr(196+4*i,4)}, s[4:5] offset:{1024*i}" + sc)

def qkv_stage_addr(a):
    a("s_lshr_b32 s13, s11, 5")
    a("s_and_b32 s14, s11, 31")
    a("s_lshl_b32 s12, s13, 3")
    a("s_add_u32 s12, s12, 16")
    a("s_load_dwordx2 s[6:7], s[0:1], s12")
    a("v_bfe_u32 v4, v2, 2, 2")
    a("v_lshlrev_b32 v4, 3, v4")
    a("v_and_b32 v5, 3, v2")
    a("v_add_u32 v4, v4, v5")
    a("v_lshlrev_b32 v4, 13, v4")
    a("v_lshrrev_b32 v5, 4, v2")
    a("v_lshlrev_b32 v5, 4, v5")
    a("v_add_u32 v4, v4, v5")
    a("v_add_u32 v5, 32768, v4")
    a("s_lshl_b32 s15, s14, 8")
    a("s_lshl_b32 s16, s3, 20")
    a("s_add_u32 s15, s15, s16")
    a("s_waitcnt lgkmcnt(0)")
    a("s_add_u32 s6, s6, s15"); a("s_addc_u32 s7, s7, 0")

def qkv_stage_loads(a, q0=0, q1=4):
    for q in range(q0, q1):
        for cp in range(4):
            b = 16 + (q*4+cp)*8
            a(f"global_load_dwordx4 {vr(b,4)}, v4, s[6:7] offset:{cp*64}")
            a(f"global_load_dwordx4 {vr(b+4,4)}, v5, s[6:7] offset:{cp*64}")
        a("s_add_u32 s6, s6, 262144"); a("s_addc_u32 s7, s7, 0")

def qkv_stage(a):
    a("s_lshl_b32 s12, s10, 2")
    a("s_add_u32 s12, s12, s3")
    a("v_lshlrev_b32 v3, 4, v2")
    a("s_lshl_b32 s15, s3, 15")
    a("v_add_u32 v4, s15, v3")
    DT = [144, 160]
    units = [(q, cp) for q in range(4) for cp in range(4)]
    def finish(i):
        q, cp = units[i]
        tr_pack(a, DT[i & 1], 176, 180)
        a(f"ds_write_b128 v4, v[176:179] offset:{(q*8+2*cp)*1024}")
        a(f"ds_write_b128 v4, v[180:183] offset:{(q*8+2*cp+1)*1024}")
    for i, (q, cp) in enumerate(units):
        if i == 15:
            a("s_cmp_eq_u32 s55, 1"); a("s_cbranch_scc1 QS_W1")
            a("s_waitcnt vmcnt(0)"); a("s_branch QS_W2")
            a.label("QS_W1"); a("s_waitcnt vmcnt(1)"); a.label("QS_W2")
        else:
            a(f"s_waitcnt vmcnt({2*(15-i)})")
        b = 16 + i*8
        tr_unit(a, vr(b,4), vr(b+4,4), DT[i & 1], SELW)
        if i: finish(i-1)
    a("s_nop 7")
    finish(15)
    a("s_lshl_b32 s16, s12, 16")
    a(f"s_add_u32 s16, s16, {OFF_XNF}")
    a("s_add_u32 s22, s4, s16"); a("s_addc_u32 s23, s5, 0")
    for tt in range(4):
        a(f"v_add_u32 v{5+tt}, {tt*16384}, v3")
    a("v_add_u32 v9, 65536, v3")

def qkv_rest(a, pre, sc, endl):
    WB = [144, 176]
    def xreg(kk, tt):
        return ar(128 + kk*16 + tt*4, 4) if kk < 8 else vr(16 + (kk-8)*16 + tt*4, 4)
    def xloads(kk):
        for tt in range(4):
            a(f"global_load_dwordx4 {xreg(kk,tt)}, v{5+tt}, s[22:23] offset:{(kk&3)*1024}")
        if (kk & 3) == 3 and kk < 15:
            a("s_add_u32 s22, s22, 4096"); a("s_addc_u32 s23, s23, 0")
    def wreads(kk):
        for et in range(8):
            a(f"ds_read_b128 {vr(WB[kk&1]+et*4,4)}, v{3 if kk<8 else 9} offset:{((kk&7)*8+et)*1024}")
    for kk in range(15): xloads(kk)
    def body(swap):
        wreads(0)
        for kk in range(16):
            if kk == 1: xloads(15)
            a(f"s_waitcnt vmcnt({4*(14-kk) if kk == 0 else 4*(15-kk)})")
            if kk == 0: a.tl1(5)
            if kk < 15:
                wreads(kk+1)
                a("s_waitcnt lgkmcnt(8)")
            else:
                a("s_waitcnt lgkmcnt(0)")
            for tt in range(4):
                for et in range(8):
                    acc = ar((tt*8+et)*4, 4)
                    c = "0" if kk == 0 else acc
                    W = vr(WB[kk&1]+et*4, 4); X = xreg(kk, tt)
                    if swap:
                        a(f"v_mfma_f32_16x16x32_bf16 {acc}, {X}, {W}, {c}")
                    else:
                        a(f"v_mfma_f32_16x16x32_bf16 {acc}, {W}, {X}, {c}")
        a("s_nop 15")
        a.tl1(6)
        for i in range(128):
            a(f"v_accvgpr_read_b32 v{ACC+i}, a{i}")
    ACC = 16
    a("s_cmp_eq_u32 s13, 2")
    a(f"s_cbranch_scc1 {pre}_V")
    body(False)
    a("s_lshl_b32 s15, s13, 24")
    a(f"s_add_u32 s15, s15, {OFF_QF}")
    a("s_lshl_b32 s16, s12, %d" % (14 if HS_LAYOUT else 19))
    a("s_add_u32 s15, s15, s16")
    a("s_lshl_b32 s16, s14, %d" % KV_HSH)
    a("s_add_u32 s15, s15, s16")
    a("s_add_u32 s20, s4, s15"); a("s_addc_u32 s21, s5, 0")
    for tt in range(4):
        sgo = (tt >> 1) * KV_SST + (tt & 1) * 1024
        a(f"v_add_u32 v4, {sgo}, v3")
        a(f"v_add_u32 v5, {sgo+4096}, v3")
        for w in range(4):
            t0 = ACC + (tt*8+2*w)*4; t1 = t0 + 4
            d = 144 + w*4
            a(f"v_cvt_pk_bf16_f32 v{d}, v{t0}, v{t0+1}")
            a(f"v_cvt_pk_bf16_f32 v{d+1}, v{t0+2}, v{t0+3}")
            a(f"v_cvt_pk_bf16_f32 v{d+2}, v{t1}, v{t1+1}")
            a(f"v_cvt_pk_bf16_f32 v{d+3}, v{t1+2}, v{t1+3}")
            a(f"global_store_dwordx4 v{4 if w<2 else 5}, {vr(d,4)}, s[20:21] offset:{(w&1)*2048}{sc}")
        a("s_nop 1")
    a(f"s_branch {endl}")
    a.label(f"{pre}_V")
    body(True)
    a("s_lshl_b32 s16, s12, %d" % (14 if HS_LAYOUT else 19))
    a(f"s_add_u32 s15, s16, {OFF_VF}")
    a("s_lshl_b32 s16, s14, %d" % KV_HSH)
    a("s_add_u32 s15, s15, s16")
    a("s_add_u32 s20, s4, s15"); a("s_addc_u32 s21, s5, 0")
    for sg in range(2):
        a(f"v_add_u32 v4, {sg*KV_SST}, v3")
        a(f"v_add_u32 v5, {sg*KV_SST+4096}, v3")
        for et in range(8):
            t0 = ACC + ((2*sg)*8+et)*4; t1 = ACC + ((2*sg+1)*8+et)*4
            d = 144 + (et&3)*4
            a(f"v_cvt_pk_bf16_f32 v{d}, v{t0}, v{t0+1}")
            a(f"v_cvt_pk_bf16_f32 v{d+1}, v{t0+2}, v{t0+3}")
            a(f"v_cvt_pk_bf16_f32 v{d+2}, v{t1}, v{t1+1}")
            a(f"v_cvt_pk_bf16_f32 v{d+3}, v{t1+2}, v{t1+3}")
            a(f"global_store_dwordx4 v{4 if et<4 else 5}, {vr(d,4)}, s[20:21] offset:{(et&3)*1024}{sc}")
            if et == 3: a("s_nop 1")
        a("s_nop 1")
```
